```python
import torch

def _softmax(x, axis=-1):
    return torch.softmax(x, dim=axis)
def _gelu(x):
    return torch.nn.functional.gelu(x, approximate="tanh")
def _silu(x):
    return torch.nn.functional.silu(x)
def _sigmoid(x):
    return torch.sigmoid(x)
def _layernorm(x, axis=-1, eps=1e-5):
    m = x.mean(dim=axis, keepdim=True)
    v = x.var(dim=axis, keepdim=True, unbiased=False)
    return (x - m) / torch.sqrt(v + eps)
def _scatter_add(tgt, idx, src, axis=0):
    return tgt.clone().index_add_(axis, idx, src)
def _segment_sum(src, seg, n):
    out = torch.zeros((n,) + src.shape[1:], dtype=src.dtype)
    return out.index_add_(0, seg, src)
def _pad(x, pw):
    flat = tuple(v for pair in reversed(pw) for v in pair)
    return torch.nn.functional.pad(x, flat)

kernel_name = 'parallel_sum__softmax_full_mha__swiglu_ffn__prompt'

def setup_inputs():

    _w = (lambda a: (lambda t: t.to(torch.bfloat16) if t.is_floating_point() else t)(torch.as_tensor(a)))
    def _A_setup():
        B, S, D = 1, 2048, 640
        return {
            "x": _w((lambda *s: torch.randn(*s, dtype=torch.bfloat16) * 0.05)(B, S, D)),
            "wqkv": _w((lambda *s: torch.randn(*s, dtype=torch.bfloat16) * 0.2)(D, 3 * D)),
            "wo": _w((lambda *s: torch.randn(*s, dtype=torch.bfloat16) * 0.1)(D, D)),
        }
    _A_in = _A_setup()

    def _B_setup():
        B, S, D, F = 1, 2048, 640, 1536
        return {
            "x": _w((lambda *s: torch.randn(*s, dtype=torch.bfloat16) * 0.05)(B, S, D)),
            "w_gate": _w((lambda *s: torch.randn(*s, dtype=torch.bfloat16) * 0.1)(D, F)),
            "w_up": _w((lambda *s: torch.randn(*s, dtype=torch.bfloat16) * 0.1)(D, F)),
            "w_down": _w((lambda *s: torch.randn(*s, dtype=torch.bfloat16) * 0.1)(F, D)),
        }
    _B_in = _B_setup()

    return {
        "A_x": _A_in["x"],
        "A_wqkv": _A_in["wqkv"],
        "A_wo": _A_in["wo"],
        "B_x": _B_in["x"],
        "B_w_gate": _B_in["w_gate"],
        "B_w_up": _B_in["w_up"],
        "B_w_down": _B_in["w_down"],
    }

def reference(A_x, A_wqkv, A_wo, B_x, B_w_gate, B_w_up, B_w_down):
    def _A_ref(x, wqkv, wo):
        B, S, D = x.shape
        H = 32; Dh = D // H
        qkv = (lambda x, *d: x.permute(*d))((x @ wqkv).reshape(B, S, 3, H, Dh), 2, 0, 3, 1, 4)
        q, k, v = qkv[0], qkv[1], qkv[2]
        scale = Dh ** -0.5
        scores = torch.einsum("bhqd,bhkd->bhqk", q, k) * scale
        p = _softmax(scores, axis=-1)
        o = torch.einsum("bhqk,bhkd->bhqd", p, v)
        return (lambda x, *d: x.permute(*d))(o, 0, 2, 1, 3).reshape(B, S, D) @ wo

    def _B_ref(x, w_gate, w_up, w_down):
        g = _silu(x @ w_gate)
        u = x @ w_up
        return (g * u) @ w_down

    x = A_x
    xn = _layernorm(x, axis=-1)
    return x + _A_ref(xn, A_wqkv, A_wo) + _B_ref(xn, B_w_gate, B_w_up, B_w_down)
```

```python
class Asm:
    def __init__(self):
        self.lines = []
    def __call__(self, s):
        for ln in s.split("\n"):
            self.lines.append("    " + ln.strip())
    def label(self, l):
        self.lines.append(l + ":")
    def raw(self, s):
        self.lines.append(s)
    def c(self, s):
        self.lines.append("    ; " + s)
    def text(self):
        return "\n".join(self.lines) + "\n"

def v(a, n=1):
    return f"v{a}" if n == 1 else f"v[{a}:{a+n-1}]"
def s(a, n=1):
    return f"s{a}" if n == 1 else f"s[{a}:{a+n-1}]"

def kernel_begin(A, name):
    A.raw(f".globl {name}")
    A.raw(".p2align 8")
    A.raw(f".type {name},@function")
    A.label(name)

def kernel_desc(name, vgpr, sgpr=96):
    acc = (vgpr + 3) // 4 * 4
    return f""".p2align 6
.amdhsa_kernel {name}
  .amdhsa_next_free_vgpr {vgpr}
  .amdhsa_next_free_sgpr {sgpr}
  .amdhsa_accum_offset {acc}
  .amdhsa_group_segment_fixed_size 0
  .amdhsa_kernarg_size 80
  .amdhsa_user_sgpr_count 2
  .amdhsa_user_sgpr_kernarg_segment_ptr 1
  .amdhsa_system_sgpr_workgroup_id_x 1
.end_amdhsa_kernel
"""

def srd(A, d, base, nbytes, off=0):
    if off:
        A(f"s_add_u32 s{d}, s{base}, {off}")
        A(f"s_addc_u32 s{d+1}, s{base+1}, 0")
    else:
        A(f"s_mov_b32 s{d}, s{base}")
        A(f"s_mov_b32 s{d+1}, s{base+1}")
    A(f"s_mov_b32 s{d+2}, {nbytes}")
    A(f"s_mov_b32 s{d+3}, 0x00020000")
```

```python
import math, sys
from asmlib import *

NAME = "parallel_sum__softmax_full_mha__swiglu_ffn__prompt"
XN_OFF = 0
Q_OFF = 0x280000
KV_OFF = 0x500000
AH_OFF = 0xA00000
AH_SIZE = 128 * 68 * 1024
QSCALE = math.log2(math.e) / math.sqrt(20.0)
import struct
def fbits(x): return struct.unpack("<I", struct.pack("<f", x))[0]

def wave_sum(A, r, t):
    for m in ("quad_perm:[1,0,3,2]", "quad_perm:[2,3,0,1]", "row_half_mirror", "row_mirror"):
        A("s_nop 1")
        A(f"v_add_f32_dpp v{r}, v{r}, v{r} {m} row_mask:0xf bank_mask:0xf")
    for p in ("v_permlane16_swap_b32", "v_permlane32_swap_b32"):
        A(f"v_mov_b32 v{t}, v{r}")
        A("s_nop 1")
        A(f"{p} v{r}, v{t}")
        A("s_nop 1")
        A(f"v_add_f32 v{r}, v{r}, v{t}")

def gen_ln(A):
    kernel_begin(A, "ln_kernel")
    A("s_cmp_ge_u32 s2, 256")
    A("s_cbranch_scc1 L_ln_end")
    A("s_load_dwordx2 s[4:5], s[0:1], 0")
    A("s_load_dwordx2 s[6:7], s[0:1], 72")
    A("v_lshrrev_b32 v1, 6, v0")
    A("v_and_b32 v2, 63, v0")
    A("v_mul_u32_u24 v1, 2560, v1")
    A("v_lshl_add_u32 v1, v2, 2, v1")
    A("s_mul_i32 s3, s2, 10240")
    A("s_waitcnt lgkmcnt(0)")
    srd(A, 8, 4, 2621440)
    srd(A, 12, 6, 2621440, XN_OFF)
    for r in range(2):
        for i in range(5):
            A(f"buffer_load_dword v{10+r*5+i}, v1, s[8:11], s3 offen offset:{r*1280+i*256}")
    A("s_waitcnt vmcnt(0)")
    for r in range(2):
        b = 20 + r * 10
        for i in range(5):
            A(f"v_lshlrev_b32 v{b+2*i}, 16, v{10+r*5+i}")
            A(f"v_and_b32 v{b+2*i+1}, 0xffff0000, v{10+r*5+i}")
        A(f"v_add_f32 v40, v{b}, v{b+1}")
        for i in range(2, 10):
            A(f"v_add_f32 v40, v40, v{b+i}")
        wave_sum(A, 40, 41)
        A(f"v_mul_f32 v40, {hex(fbits(1.0/640))}, v40")
        for i in range(10):
            A(f"v_sub_f32 v{b+i}, v{b+i}, v40")
        A(f"v_mul_f32 v42, v{b}, v{b}")
        for i in range(1, 10):
            A(f"v_fmac_f32 v42, v{b+i}, v{b+i}")
        wave_sum(A, 42, 41)
        A(f"v_mov_b32 v43, {hex(fbits(1e-5))}")
        A(f"v_fmac_f32 v43, {hex(fbits(1.0/640))}, v42")
        A("v_rsq_f32 v43, v43")
        A("s_nop 0")
        for i in range(10):
            A(f"v_mul_f32 v{b+i}, v{b+i}, v43")
        for i in range(5):
            A(f"v_cvt_pk_bf16_f32 v{10+r*5+i}, v{b+2*i}, v{b+2*i+1}")
            A(f"buffer_store_dword v{10+r*5+i}, v1, s[12:15], s3 offen offset:{r*1280+i*256}")
    A.label("L_ln_end")
    A("s_endpgm")

NST = 2
def gemm_stage_dma(A, slot):
    for jj in range(4):
        A(f"s_add_u32 m0, s29, {slot*32768 + jj*4096}")
        if jj:
            A(f"s_add_u32 s30, s24, {jj*40960}")
        else:
            A("s_nop 0")
        A(f"buffer_load_dwordx4 v101, s[4:7], {'s30' if jj else 's24'} offen lds")
    for st in range(2):
        for jj in range(2):
            A(f"s_add_u32 m0, s29, {slot*32768 + 16384 + st*8192 + jj*4096}")
            if jj:
                A(f"s_add_u32 s30, s{25+st}, s27")
            else:
                A("s_nop 0")
            A(f"buffer_load_dwordx4 v102, s[{8+4*st}:{11+4*st}], {'s30' if jj else f's{25+st}'} offen lds")
    A("s_add_u32 s24, s24, 128")
    A("s_add_u32 s25, s25, s28")
    A("s_add_u32 s26, s26, s28")

def gemm_frag_reads(A, slot, ks, buf):
    fb = 64 + 16 * buf
    for tm in range(2):
        A(f"ds_read_b128 {v(fb+4*tm,4)}, v{96+ks} offset:{slot*32768 + tm*4096}")
    for st in range(2):
        for rd in range(2):
            A(f"ds_read_b64_tr_b16 {v(fb+8+4*st+2*rd,2)}, v100 offset:{slot*32768 + 16384 + st*8192 + (16*ks+4*rd)*128}")

def gemm_loop(A, transposed):
    for kt in range(10):
        slot = kt % NST
        inflight = min(NST - 2, 9 - kt) if kt else NST - 2
        A(f"s_waitcnt vmcnt({8*max(0,min(NST-2, 9-kt))})")
        A("s_barrier")
        gemm_frag_reads(A, slot, 0, 0)
        if kt + NST - 1 < 10:
            gemm_stage_dma(A, (kt + NST - 1) % NST)
        for ks in range(4):
            if ks < 3:
                gemm_frag_reads(A, slot, ks + 1, (ks + 1) & 1)
                A("s_waitcnt lgkmcnt(6)")
            else:
                A("s_waitcnt lgkmcnt(0)")
            fb = 64 + 16 * (ks & 1)
            for tm in range(2):
                for st in range(2):
                    acc = v(16 * (2 * tm + st), 16)
                    xa, wa = v(fb + 4 * tm, 4), v(fb + 8 + 4 * st, 4)
                    c = "0" if (kt == 0 and ks == 0) else acc
                    if transposed:
                        A(f"v_mfma_f32_32x32x16_bf16 {acc}, {wa}, {xa}, {c}")
                    else:
                        A(f"v_mfma_f32_32x32x16_bf16 {acc}, {xa}, {wa}, {c}")
    A("s_nop 15")

def gen_gemm1(A):
    kernel_begin(A, "gemm1_kernel")
    A("s_cmp_ge_u32 s2, 624")
    A("s_cbranch_scc1 L_g1_end")
    A("s_load_dwordx2 s[34:35], s[0:1], 8")
    A("s_load_dwordx4 s[36:39], s[0:1], 32")
    A("s_load_dwordx2 s[40:41], s[0:1], 72")
    A("v_lshrrev_b32 v1, 6, v0")
    A("v_and_b32 v103, 63, v0")
    A("v_readfirstlane_b32 s20, v1")
    A("s_lshl_b32 s29, s20, 10")
    A("s_lshr_b32 s21, s20, 1")
    A("s_and_b32 s22, s20, 1")
    A("s_cmp_ge_u32 s2, 240")
    A("s_cselect_b32 s23, 240, 0")
    A("s_mov_b32 s33, 3840")
    A("s_cmov_b32 s33, 3072")
    A("s_sub_u32 s23, s2, s23")
    A("s_and_b32 s31, s23, 15")
    A("s_lshr_b32 s32, s23, 4")
    A("s_lshl_b32 s27, s33, 5")
    A("s_lshl_b32 s28, s33, 6")
    A("s_mul_i32 s24, s31, 163840")
    A("v_lshrrev_b32 v2, 3, v103")
    A("v_lshl_add_u32 v2, v1, 3, v2")
    A("v_lshrrev_b32 v3, 4, v103")
    A("v_and_b32 v4, 1, v1")
    A("v_lshl_add_u32 v4, v4, 2, v3")
    A("v_and_b32 v5, 7, v103")
    A("v_xor_b32 v4, v4, v5")
    A("v_lshlrev_b32 v4, 4, v4")
    A("v_mul_u32_u24 v101, 1280, v2")
    A("v_add_u32 v101, v101, v4")
    A("v_and_b32 v3, 1, v3")
    A("v_lshlrev_b32 v3, 2, v3")
    A("v_xor_b32 v3, v3, v5")
    A("v_lshlrev_b32 v3, 4, v3")
    A("v_mul_u32_u24 v102, s33, v2")
    A("v_add_u32 v102, v102, v3")
    A("v_and_b32 v104, 31, v103")
    A("v_lshrrev_b32 v105, 5, v103")
    A("s_lshl_b32 s30, s21, 13")
    A("v_lshl_add_u32 v2, v104, 7, s30")
    A("v_bfe_u32 v3, v103, 1, 3")
    A("v_xor_b32 v3, v3, v105")
    for ks in range(4):
        A(f"v_xor_b32 v4, {2*ks}, v3")
        A(f"v_lshl_add_u32 v{96+ks}, v4, 4, v2")
    A("v_bfe_u32 v2, v103, 2, 2")
    A("v_lshl_add_u32 v2, v105, 3, v2")
    A("v_lshlrev_b32 v2, 7, v2")
    A("v_bfe_u32 v3, v103, 4, 1")
    A("v_lshlrev_b32 v3, 5, v3")
    A("v_and_b32 v4, 3, v103")
    A("v_lshl_add_u32 v3, v4, 3, v3")
    A("v_bfe_u32 v4, v103, 3, 1")
    A("v_xor_b32 v4, s22, v4")
    A("v_lshl_add_u32 v3, v4, 6, v3")
    A("v_add_u32 v100, v2, v3")
    A("s_waitcnt lgkmcnt(0)")
    srd(A, 4, 40, 2621440, XN_OFF)
    A("s_cmp_ge_u32 s2, 240")
    A("s_cbranch_scc1 L_g1_gu_setup")
    srd(A, 8, 34, 640 * 3840)
    srd(A, 12, 34, 640 * 3840)
    A("s_lshl_b32 s25, s32, 8")
    A("s_add_u32 s26, s25, 128")
    A("s_branch L_g1_go")
    A.label("L_g1_gu_setup")
    srd(A, 8, 36, 640 * 3072)
    srd(A, 12, 38, 640 * 3072)
    A("s_lshl_b32 s25, s32, 7")
    A("s_mov_b32 s26, s25")
    A.label("L_g1_go")
    for p in range(NST - 1):
        gemm_stage_dma(A, p)
    A("s_lshl_b32 s42, s31, 2")
    A("s_lshl_b32 s43, s21, 1")
    A("s_add_u32 s42, s42, s43")
    A("s_cmp_ge_u32 s2, 240")
    A("s_cbranch_scc1 L_g1_T")
    A("s_cmp_ge_u32 s32, 10")
    A("s_cbranch_scc1 L_g1_V")
    A.label("L_g1_T")
    gemm_loop(A, True)
    A("s_cmp_ge_u32 s2, 240")
    A("s_cbranch_scc1 L_g1_epi_gu")
    A("s_cmp_ge_u32 s32, 5")
    A(f"s_mov_b32 s44, {Q_OFF}")
    A(f"s_cmov_b32 s44, {KV_OFF}")
    A("s_mov_b32 s45, 81920")
    A("s_cmov_b32 s45, 163840")
    A("s_mov_b32 s46, 1280")
    A("s_cmov_b32 s46, 2560")
    A(f"s_cselect_b32 s47, 1.0, {hex(fbits(QSCALE))}")
    A("s_cselect_b32 s48, 160, 0")
    A("s_mov_b32 s18, 2621440")
    A("s_cmov_b32 s18, 5242880")
    A("s_add_u32 s16, s40, s44")
    A("s_addc_u32 s17, s41, 0")
    A("s_mov_b32 s19, 0x00020000")
    A("s_lshl_b32 s49, s32, 5")
    A("s_sub_u32 s49, s49, s48")
    A("s_lshl_b32 s50, s22, 3")
    A("s_add_u32 s49, s49, s50")
    A("s_mul_i32 s50, s42, s46")
    A("s_add_u32 s51, s50, s46")
    A("v_add_u32 v64, s49, v105")
    A("v_lshlrev_b32 v65, 4, v104")
    for st in range(2):
        for q in range(4):
            A(f"v_add_u32 v66, {st*16+2*q}, v64")
            A("v_mul_u32_u24 v67, 205, v66")
            A("v_lshrrev_b32 v67, 10, v67")
            A("v_mul_u32_u24 v68, 5, v67")
            A("v_sub_u32 v66, v66, v68")
            A("v_lshrrev_b32 v68, 2, v66")
            A("v_lshrrev_b32 v68, v68, v65")
            A("v_mad_u32_u24 v68, v67, s45, v68")
            A("v_lshrrev_b32 v67, 1, v66")
            A("v_lshl_add_u32 v68, v67, 9, v68")
            A("v_and_b32 v67, 1, v66")
            A("v_lshl_add_u32 v68, v67, 3, v68")
            for tm in range(2):
                a = 16 * (2 * tm + st) + 4 * q
                d = 70 + 2 * tm
                for i in range(4):
                    A(f"v_mul_f32 v{a+i}, s47, v{a+i}")
                A(f"v_cvt_pk_bf16_f32 v{d}, v{a}, v{a+1}")
                A(f"v_cvt_pk_bf16_f32 v{d+1}, v{a+2}, v{a+3}")
                A(f"buffer_store_dwordx2 {v(d,2)}, v68, s[16:19], s{50+tm} offen")
    A("s_endpgm")
    A.label("L_g1_epi_gu")
    srd(A, 16, 40, AH_SIZE, AH_OFF)
    A("v_bfe_u32 v64, v103, 4, 1")
    A("v_mul_u32_u24 v64, 69632, v64")
    A("v_lshl_add_u32 v64, v105, 8, v64")
    A("v_and_b32 v65, 15, v103")
    A("v_lshl_add_u32 v64, v65, 4, v64")
    A("s_mul_i32 s50, s42, 139264")
    A("s_lshl_b32 s51, s32, 1")
    A("s_add_u32 s51, s51, s22")
    A("s_add_u32 s51, s51, 20")
    A("s_lshl_b32 s51, s51, 10")
    A("s_add_u32 s50, s50, s51")
    A("s_add_u32 s51, s50, 139264")
    A(f"s_mov_b32 s47, {hex(fbits(-math.log2(math.e)))}")
    for tm in range(2):
        g, u = 32 * tm, 32 * tm + 16
        for half in range(2):
            t = 68
            for i in range(8):
                A(f"v_mul_f32 v{t+i}, s47, v{g+8*half+i}")
            for i in range(8):
                A(f"v_exp_f32 v{t+i}, v{t+i}")
            for i in range(8):
                A(f"v_mul_f32 v{g+8*half+i}, v{g+8*half+i}, v{u+8*half+i}")
            for i in range(8):
                A(f"v_add_f32 v{t+i}, 1.0, v{t+i}")
            for i in range(8):
                A(f"v_rcp_f32 v{t+i}, v{t+i}")
            A("s_nop 0")
            for i in range(8):
                A(f"v_mul_f32 v{t+i}, v{t+i}, v{g+8*half+i}")
            d = 80 + 4 * (2 * tm + half)
            for i in range(4):
                A(f"v_cvt_pk_bf16_f32 v{d+i}, v{t+2*i}, v{t+2*i+1}")
            A(f"buffer_store_dwordx4 {v(d,4)}, v64, s[16:19], s{50+tm} offen offset:{half*512}")
    A("s_endpgm")
    A.label("L_g1_V")
    gemm_loop(A, False)
    srd(A, 16, 40, 5242880, KV_OFF)
    A("s_lshl_b32 s49, s32, 7")
    A("s_sub_u32 s49, s49, 1280")
    A("s_lshl_b32 s50, s22, 5")
    A("s_add_u32 s49, s49, s50")
    A("s_mul_i32 s50, s42, 2560")
    A("s_add_u32 s51, s50, 2560")
    A("s_mov_b32 s45, 163840")
    A("v_mul_u32_u24 v65, 320, v105")
    for st in range(2):
        A(f"v_add_u32 v66, s49, v104")
        if st:
            A("v_add_u32 v66, 64, v66")
        A("v_mul_u32_u24 v67, 3277, v66")
        A("v_lshrrev_b32 v67, 16, v67")
        A("v_mul_u32_u24 v68, 20, v67")
        A("v_sub_u32 v66, v66, v68")
        A("v_lshl_add_u32 v68, v66, 4, v65")
        A(f"v_mad_u32_u24 v{64 if st else 69}, v67, s45, v68")
        va = 64 if st else 69
        for tm in range(2):
            for mf in range(2):
                a = 16 * (2 * tm + st) + 8 * mf
                d = 72 + 4 * (mf + 2 * tm + 4 * st)
                if d + 3 > 95: d -= 16
                for i in range(4):
                    A(f"v_cvt_pk_bf16_f32 v{d+i}, v{a+2*i}, v{a+2*i+1}")
                A(f"buffer_store_dwordx4 {v(d,4)}, v{va}, s[16:19], s{50+tm} offen offset:{1280+mf*640}")
    A.label("L_g1_end")
    A("s_endpgm")

S_ = [0, 16]; NEGM = 32; OACC = 48; P_ = 64
KA = [72, 76]; KB = [80, 82]; VF = [84, 92]; QA = 100; QB = 104
vKA, vKB, vV = 106, 107, 108
M_OFFSET = 80.0

def att_out(A):
    A("v_rcp_f32 v110, v110")
    A("s_nop 0")
    for i in range(12):
        A(f"v_mul_f32 v{OACC+i}, v{OACC+i}, v110")
    for q in range(3):
        A(f"v_add_u32 v111, s41, v122" if q == 0 else f"v_add_u32 v111, 2, v111")
        A("v_lshrrev_b32 v112, 3, v111")
        A("v_lshl_add_u32 v112, v112, 10, v109")
        A("v_bfe_u32 v113, v111, 2, 1")
        A("v_lshl_add_u32 v112, v113, 9, v112")
        A("v_and_b32 v113, 1, v111")
        A("v_lshl_add_u32 v112, v113, 8, v112")
        A("v_bfe_u32 v113, v111, 1, 1")
        A("v_lshl_add_u32 v112, v113, 3, v112")
        A(f"v_cvt_pk_bf16_f32 v{114+2*q}, v{OACC+4*q}, v{OACC+4*q+1}")
        A(f"v_cvt_pk_bf16_f32 v{115+2*q}, v{OACC+4*q+2}, v{OACC+4*q+3}")
        if q == 2:
            A("s_mov_b32 exec_hi, 0")
        A(f"buffer_store_dwordx2 {v(114+2*q,2)}, v112, s[16:19], s40 offen")
    A("s_endpgm")

def att_dma(A, slot):
    for i in range(5):
        A(f"s_add_u32 m0, s29, {slot*40960 + i*8192}")
        A(f"s_add_u32 s30, s24, {i*8192}")
        A("buffer_load_dwordx4 v120, s[4:7], s30 offen lds")
    A("s_add_u32 s24, s24, 40960")

def gen_att(A):
    kernel_begin(A, "att_kernel")
    A("s_cmp_ge_u32 s2, 256")
    A("s_cbranch_scc1 L_att_end")
    A("s_load_dwordx2 s[34:35], s[0:1], 72")
    A("v_lshrrev_b32 v1, 6, v0")
    A("v_and_b32 v119, 63, v0")
    A("v_readfirstlane_b32 s20, v1")
    A("v_lshlrev_b32 v120, 4, v119")
    A("v_and_b32 v121, 31, v119")
    A("v_lshrrev_b32 v122, 5, v119")
    A("s_and_b32 s21, s2, 7")
    A("s_lshl_b32 s21, s21, 2")
    A("s_bfe_u32 s22, s2, 0x20003")
    A("s_add_u32 s21, s21, s22")
    A("s_lshr_b32 s22, s2, 5")
    A("s_lshl_b32 s22, s22, 3")
    A("s_add_u32 s22, s22, s20")
    A("s_lshl_b32 s29, s20, 10")
    A("s_mul_i32 s23, s21, 163840")
    A("s_add_u32 s24, s23, s29")
    A("s_waitcnt lgkmcnt(0)")
    srd(A, 4, 34, 5242880, KV_OFF)
    srd(A, 8, 34, 2621440, Q_OFF)
    srd(A, 16, 34, AH_SIZE, AH_OFF)
    A("s_lshl_b32 s30, s21, 6")
    A("s_add_u32 s30, s30, s22")
    A("s_mul_i32 s30, s30, 1280")
    A("v_lshlrev_b32 v2, 3, v121")
    A("v_lshl_add_u32 v2, v122, 30, v2")
    A(f"buffer_load_dwordx4 {v(QA,4)}, v120, s[8:11], s30 offen")
    A(f"buffer_load_dwordx2 {v(QB,2)}, v2, s[8:11], s30 offen offset:1024")
    att_dma(A, 0)
    att_dma(A, 1)
    A(f"v_mov_b32 v{vKA}, v120")
    A(f"v_lshlrev_b32 v{vKB}, 3, v121")
    A(f"v_mul_u32_u24 v{vV}, 320, v122")
    A(f"v_lshl_add_u32 v{vV}, v121, 4, v{vV}")
    A("v_cmp_gt_u32 s[36:37], 20, v121")
    A("v_cmp_eq_u32 vcc, 20, v121")
    A("v_mov_b32 v3, 0x3f803f80")
    A("s_nop 0")
    A("v_cndmask_b32 v3, 0, v3, vcc")
    for i in range(16):
        A(f"v_mov_b32 v{VF[0]+i}, v3")
    for i in range(16):
        A(f"v_mov_b32 v{OACC+i}, 0")
    A("s_mul_i32 s41, s21, 5")
    A("s_mul_i32 s40, s22, 139264")
    A("v_bfe_u32 v109, v119, 4, 1")
    A("v_mul_u32_u24 v109, 69632, v109")
    A("v_and_b32 v2, 15, v119")
    A("v_lshl_add_u32 v109, v2, 4, v109")
    A("s_waitcnt vmcnt(5)")
    A("s_barrier")
    for t in range(4):
        A(f"ds_read_b128 {v(KA[t&1],4)}, v{vKA} offset:{t*2560}")
        A(f"ds_read_b64 {v(KB[t&1],2)}, v{vKB} offset:{t*2560+1024}")
        A("s_waitcnt lgkmcnt(0)")
        sb = S_[t & 1]
        A(f"v_mfma_f32_32x32x16_bf16 {v(sb,16)}, {v(KA[t&1],4)}, {v(QA,4)}, 0")
        A("s_nop 9")
        A(f"v_mfma_f32_32x32x8bf16_1k {v(sb,16)}, {v(KB[t&1],2)}, {v(QB,2)}, {v(sb,16)}")
        A("s_nop 11")
        for i in range(8):
            if t == 0 and i == 0:
                A(f"v_max_f32 v110, v{sb}, v{sb+1}")
            else:
                A(f"v_max3_f32 v110, v110, v{sb+2*i}, v{sb+2*i+1}")
    A("v_mov_b32 v111, v110")
    A("s_nop 1")
    A("v_permlane32_swap_b32 v110, v111")
    A("s_nop 1")
    A("v_max_f32 v110, v110, v111")
    A(f"v_sub_f32 v110, {hex(fbits(-M_OFFSET))}, v110")
    for i in range(16):
        A(f"v_mov_b32 v{NEGM+i}, v110")
    A(f"ds_read_b128 {v(KA[0],4)}, v{vKA}")
    A(f"ds_read_b64 {v(KB[0],2)}, v{vKB} offset:1024")
    A(f"ds_read_b128 {v(KA[1],4)}, v{vKA} offset:2560")
    A(f"ds_read_b64 {v(KB[1],2)}, v{vKB} offset:{2560+1024}")
    A("s_mov_b64 exec, s[36:37]")
    A(f"ds_read_b128 {v(VF[0],4)}, v{vV} offset:1280")
    A(f"ds_read_b128 {v(VF[0]+4,4)}, v{vV} offset:1920")
    A("s_mov_b64 exec, -1")
    A("s_waitcnt lgkmcnt(4)")
    A(f"v_mfma_f32_32x32x16_bf16 {v(S_[0],16)}, {v(KA[0],4)}, {v(QA,4)}, {v(NEGM,16)}")
    A("s_nop 9")
    A(f"v_mfma_f32_32x32x8bf16_1k {v(S_[0],16)}, {v(KB[0],2)}, {v(QB,2)}, {v(S_[0],16)}")
    for i in range(4):
        A(f"v_mov_b32 v{P_+4+i}, 0")
    A("s_nop 7")
    A("s_mov_b32 s42, 0")
    A("s_mov_b32 s43, 40960")
    A.raw(".p2align 6")
    A.label("L_att_loop")
    for t in range(16):
        cur, nxt = S_[t & 1], S_[(t + 1) & 1]
        A("s_waitcnt lgkmcnt(0)")
        if t == 14:
            A("s_waitcnt vmcnt(0)")
            A("s_barrier")
            A(f"v_add_u32 v{vKA}, s43, v{vKA}")
            A(f"v_add_u32 v{vKB}, s43, v{vKB}")
        if t == 15:
            A(f"v_add_u32 v{vV}, s43, v{vV}")
            A("s_barrier")
            A("s_cmp_ge_u32 s42, 2")
            A(f"s_cbranch_scc1 L_att_nodma")
            A("s_mul_i32 s44, s42, 40960")
            A("s_add_u32 s44, s44, s29")
            for i in range(5):
                A(f"s_add_u32 m0, s44, {i*8192}")
                A(f"s_add_u32 s30, s24, {i*8192}")
                A("buffer_load_dwordx4 v120, s[4:7], s30 offen lds")
            A("s_add_u32 s24, s24, 40960")
            A.label("L_att_nodma")
        tk = (t + 2) & 15
        tv = (t + 1) & 15
        A(f"ds_read_b128 {v(KA[t&1],4)}, v{vKA} offset:{tk*2560}")
        A(f"v_mfma_f32_32x32x16_bf16 {v(OACC,16)}, {v(VF[(t+1)&1]+4,4)}, {v(P_+4,4)}, {v(OACC,16)}")
        A(f"ds_read_b64 {v(KB[t&1],2)}, v{vKB} offset:{tk*2560+1024}")
        A("s_mov_b64 exec, s[36:37]")
        A(f"ds_read_b128 {v(VF[(t+1)&1],4)}, v{vV} offset:{tv*2560+1280}")
        A(f"ds_read_b128 {v(VF[(t+1)&1]+4,4)}, v{vV} offset:{tv*2560+1920}")
        A("s_mov_b64 exec, -1")
        A(f"v_mfma_f32_32x32x16_bf16 {v(nxt,16)}, {v(KA[(t+1)&1],4)}, {v(QA,4)}, {v(NEGM,16)}")
        for i in range(8):
            A(f"v_exp_f32 v{cur+i}, v{cur+i}")
        for i in range(4):
            A(f"v_cvt_pk_bf16_f32 v{P_+i}, v{cur+2*i}, v{cur+2*i+1}")
        A(f"v_mfma_f32_32x32x8bf16_1k {v(nxt,16)}, {v(KB[(t+1)&1],2)}, {v(QB,2)}, {v(nxt,16)}")
        for i in range(8, 12):
            A(f"v_exp_f32 v{cur+i}, v{cur+i}")
        A(f"v_mfma_f32_32x32x16_bf16 {v(OACC,16)}, {v(VF[t&1],4)}, {v(P_,4)}, {v(OACC,16)}")
        for i in range(12, 16):
            A(f"v_exp_f32 v{cur+i}, v{cur+i}")
        for i in range(4, 8):
            A(f"v_cvt_pk_bf16_f32 v{P_+i}, v{cur+2*i}, v{cur+2*i+1}")
    A("s_sub_u32 s43, 0, s43")
    A("s_add_u32 s42, s42, 1")
    A("s_cmp_lt_u32 s42, 4")
    A("s_cbranch_scc1 L_att_loop")
    A(f"v_mfma_f32_32x32x16_bf16 {v(OACC,16)}, {v(VF[1]+4,4)}, {v(P_+4,4)}, {v(OACC,16)}")
    A("s_waitcnt lgkmcnt(0)")
    A("s_nop 11")
    A(f"v_mov_b32 v111, v{OACC+8}")
    A(f"v_mov_b32 v110, v{OACC+8}")
    A("s_nop 1")
    A("v_permlane32_swap_b32 v111, v110")
    A("s_mov_b32 s45, 0x1f8")
    A(f"s_mov_b32 s46, {hex(fbits(2.0**100))}")
    A("v_cmp_ge_f32 s[38:39], s46, v110")
    for i in range(12):
        A(f"v_cmp_class_f32_e64 vcc, v{OACC+i}, s45")
        A("s_and_b64 s[38:39], s[38:39], vcc")
    A("s_cmp_eq_u64 s[38:39], -1")
    A("s_cbranch_scc0 L_att_slow")
    A.label("L_att_fin")
    att_out(A)
    A.label("L_att_slow")
    A("v_lshlrev_b32 v106, 3, v121")
    A("v_mul_u32_u24 v108, 320, v122")
    A("v_lshl_add_u32 v108, v121, 4, v108")
    A("v_mov_b32 v110, 0xff800000")
    A("s_mov_b32 s42, s23")
    A("s_add_u32 s43, s23, 163840")
    A.label("L_att_slow1")
    A(f"buffer_load_dwordx4 {v(KA[0],4)}, v120, s[4:7], s42 offen")
    A(f"buffer_load_dwordx2 {v(KB[0],2)}, v106, s[4:7], s42 offen offset:1024")
    A("s_waitcnt vmcnt(0)")
    A(f"v_mfma_f32_32x32x16_bf16 {v(0,16)}, {v(KA[0],4)}, {v(QA,4)}, 0")
    A("s_nop 9")
    A(f"v_mfma_f32_32x32x8bf16_1k {v(0,16)}, {v(KB[0],2)}, {v(QB,2)}, {v(0,16)}")
    A("s_nop 11")
    for i in range(8):
        A(f"v_max3_f32 v110, v110, v{2*i}, v{2*i+1}")
    A("s_add_u32 s42, s42, 2560")
    A("s_cmp_lt_u32 s42, s43")
    A("s_cbranch_scc1 L_att_slow1")
    A("v_mov_b32 v111, v110")
    A("s_nop 1")
    A("v_permlane32_swap_b32 v110, v111")
    A("s_nop 1")
    A("v_max_f32 v110, v110, v111")
    A("v_sub_f32 v110, 0, v110")
    for i in range(16):
        A(f"v_mov_b32 v{NEGM+i}, v110")
        A(f"v_mov_b32 v{OACC+i}, 0")
    A("s_mov_b32 s42, s23")
    A.label("L_att_slow2")
    A(f"buffer_load_dwordx4 {v(KA[0],4)}, v120, s[4:7], s42 offen")
    A(f"buffer_load_dwordx2 {v(KB[0],2)}, v106, s[4:7], s42 offen offset:1024")
    A("s_mov_b64 exec, s[36:37]")
    A(f"buffer_load_dwordx4 {v(VF[0],4)}, v108, s[4:7], s42 offen offset:1280")
    A(f"buffer_load_dwordx4 {v(VF[0]+4,4)}, v108, s[4:7], s42 offen offset:1920")
    A("s_mov_b64 exec, -1")
    A("s_waitcnt vmcnt(0)")
    A(f"v_mfma_f32_32x32x16_bf16 {v(0,16)}, {v(KA[0],4)}, {v(QA,4)}, {v(NEGM,16)}")
    A("s_nop 9")
    A(f"v_mfma_f32_32x32x8bf16_1k {v(0,16)}, {v(KB[0],2)}, {v(QB,2)}, {v(0,16)}")
    A("s_nop 11")
    for i in range(16):
        A(f"v_exp_f32 v{i}, v{i}")
    for i in range(8):
        A(f"v_cvt_pk_bf16_f32 v{P_+i}, v{2*i}, v{2*i+1}")
    A("s_nop 1")
    A(f"v_mfma_f32_32x32x16_bf16 {v(OACC,16)}, {v(VF[0],4)}, {v(P_,4)}, {v(OACC,16)}")
    A(f"v_mfma_f32_32x32x16_bf16 {v(OACC,16)}, {v(VF[0]+4,4)}, {v(P_+4,4)}, {v(OACC,16)}")
    A("s_add_u32 s42, s42, 2560")
    A("s_cmp_lt_u32 s42, s43")
    A("s_cbranch_scc1 L_att_slow2")
    A("s_nop 11")
    A(f"v_mov_b32 v111, v{OACC+8}")
    A(f"v_mov_b32 v110, v{OACC+8}")
    A("s_nop 1")
    A("v_permlane32_swap_b32 v111, v110")
    A("s_nop 1")
    A("s_branch L_att_fin")
    A.label("L_att_end")
    A("s_endpgm")

FD = 6
def fin_issue(A, step):
    slot = step % FD
    srdw = "s[8:11]" if step < 5 else "s[12:15]"
    sw = "s24" if step < 5 else "s25"
    for j in range(5):
        A(f"s_add_u32 m0, s29, {slot*5120 + j*1024}")
        A("s_nop 0")
        A(f"buffer_load_dwordx4 v{216+j}, {srdw}, {sw} offen lds")
    A(f"s_add_u32 {sw}, {sw}, 40960")
    if step == 5:
        for u in range(4):
            A(f"s_add_u32 s{30+u}, s{30+u}, s34")
    for u in range(4):
        A(f"buffer_load_dwordx4 {v(80+16*slot+4*u,4)}, v221, s[4:7], s{30+u} offen")
        A(f"s_add_u32 s{30+u}, s{30+u}, 1024")

def fin_trreads(A, step):
    slot = step % FD
    b = 176 + 20 * (step & 1)
    for nt in range(5):
        for rd in range(2):
            A(f"ds_read_b64_tr_b16 {v(b+4*nt+2*rd,2)}, v222 offset:{slot*5120 + rd*1280 + nt*32}")

def gen_fin(A):
    kernel_begin(A, "fin_kernel")
    A("s_cmp_ge_u32 s2, 256")
    A("s_cbranch_scc1 L_fin_end")
    A("s_load_dwordx2 s[36:37], s[0:1], 0")
    A("s_load_dwordx2 s[38:39], s[0:1], 16")
    A("s_load_dwordx4 s[40:43], s[0:1], 48")
    A("s_load_dwordx2 s[44:45], s[0:1], 72")
    A("v_lshrrev_b32 v1, 6, v0")
    A("v_and_b32 v223, 63, v0")
    A("v_readfirstlane_b32 s20, v1")
    A("s_and_b32 s21, s2, 7")
    A("s_lshl_b32 s21, s21, 2")
    A("s_bfe_u32 s22, s2, 0x20003")
    A("s_add_u32 s21, s21, s22")
    A("s_lshr_b32 s22, s2, 5")
    A("s_mul_i32 s29, s20, 30720")
    A("s_mul_i32 s23, s22, 160")
    A("s_mul_i32 s24, s20, 204800")
    A("s_add_u32 s24, s24, s23")
    A("s_mul_i32 s25, s20, 491520")
    A("s_add_u32 s25, s25, s23")
    for u in range(4):
        A(f"s_add_u32 s{30+u}, s20, {u}")
        A(f"s_and_b32 s{30+u}, s{30+u}, 3")
        A(f"s_lshl_b32 s35, s21, 2")
        A(f"s_add_u32 s{30+u}, s{30+u}, s35")
        A(f"s_mul_i32 s{30+u}, s{30+u}, 68")
        A(f"s_mul_i32 s35, s20, 5")
        A(f"s_add_u32 s{30+u}, s{30+u}, s35")
        A(f"s_lshl_b32 s{30+u}, s{30+u}, 10")
    A("s_mul_i32 s34, s20, 7")
    A("s_add_u32 s34, s34, 15")
    A("s_lshl_b32 s34, s34, 10")
    for j in range(5):
        A(f"v_add_u32 v2, {64*j}, v223")
        A("v_mul_u32_u24 v3, 6554, v2")
        A("v_lshrrev_b32 v3, 16, v3")
        A("v_mul_u32_u24 v4, 10, v3")
        A("v_sub_u32 v2, v2, v4")
        A("v_mul_u32_u24 v3, 1280, v3")
        A(f"v_lshl_add_u32 v{216+j}, v2, 4, v3")
    A("v_lshlrev_b32 v221, 4, v223")
    A("v_lshrrev_b32 v2, 5, v223")
    A("v_lshlrev_b32 v2, 4, v2")
    A("v_bfe_u32 v3, v223, 4, 1")
    A("v_lshl_add_u32 v2, v3, 2, v2")
    A("v_bfe_u32 v3, v223, 2, 2")
    A("v_add_u32 v2, v2, v3")
    A("v_mul_u32_u24 v2, 160, v2")
    A("v_and_b32 v3, 3, v223")
    A("v_lshl_add_u32 v2, v3, 3, v2")
    A("v_add_u32 v222, s29, v2")
    A("v_and_b32 v2, 15, v223")
    A("v_mul_u32_u24 v2, 1280, v2")
    A("v_lshrrev_b32 v3, 4, v223")
    A("v_lshl_add_u32 v224, v3, 3, v2")
    A("s_lshl_b32 s46, s21, 2")
    A("s_add_u32 s46, s46, s20")
    A("s_mul_i32 s46, s46, 20480")
    A("s_add_u32 s46, s46, s23")
    A("s_waitcnt lgkmcnt(0)")
    srd(A, 4, 44, AH_SIZE, AH_OFF)
    srd(A, 8, 38, 640 * 1280)
    srd(A, 12, 40, 1536 * 1280)
    srd(A, 16, 42, 2621440)
    srd(A, 48, 36, 2621440)
    for nt in range(5):
        A(f"buffer_load_dwordx2 {v(226+2*nt,2)}, v224, s[48:51], s46 offen offset:{nt*32}")
    for st in range(FD):
        fin_issue(A, st)
    NS = 17
    A(f"s_waitcnt vmcnt({9*(FD-1)})")
    fin_trreads(A, 0)
    for st in range(NS):
        if st + 1 < NS:
            issued = min(NS, st + FD)
            A(f"s_waitcnt vmcnt({9*(issued - (st+2))})")
            fin_trreads(A, st + 1)
            A("s_waitcnt lgkmcnt(10)")
        else:
            A("s_waitcnt lgkmcnt(0)")
        b = 176 + 20 * (st & 1)
        ab = 80 + 16 * (st % FD)
        for nt in range(5):
            for u in range(4):
                acc = v(4 * (nt * 4 + u), 4)
                A(f"v_mfma_f32_16x16x32_bf16 {acc}, {v(b+4*nt,4)}, {v(ab+4*u,4)}, {'0' if st == 0 else acc}")
        if st + FD < NS:
            fin_issue(A, st + FD)
    A("s_barrier")
    for u in range(1, 4):
        A(f"s_add_u32 s30, s20, {u}")
        A("s_and_b32 s30, s30, 3")
        A("s_mul_i32 s30, s30, 15360")
        A(f"v_add_u32 v80, s30, v221")
        for nt in range(5):
            A(f"ds_write_b128 v80, {v(4*(nt*4+u),4)} offset:{(u-1)*5120 + nt*1024}")
    A("s_mul_i32 s30, s20, 15360")
    A("v_add_u32 v80, s30, v221")
    A("s_waitcnt lgkmcnt(0)")
    A("s_barrier")
    for u in range(3):
        for nt in range(5):
            A(f"ds_read_b128 {v(84+20*u+4*nt,4)}, v80 offset:{u*5120 + nt*1024}")
    for nt in range(5):
        a = 16 * nt
        A(f"v_lshlrev_b32 v150, 16, v{226+2*nt}")
        A(f"v_and_b32 v151, 0xffff0000, v{226+2*nt}")
        A(f"v_lshlrev_b32 v152, 16, v{227+2*nt}")
        A(f"v_and_b32 v153, 0xffff0000, v{227+2*nt}")
        for i in range(4):
            A(f"v_add_f32 v{a+i}, v{a+i}, v{150+i}")
    A("s_waitcnt lgkmcnt(0)")
    for nt in range(5):
        a = 16 * nt
        for u in range(3):
            for i in range(4):
                A(f"v_add_f32 v{a+i}, v{a+i}, v{84+20*u+4*nt+i}")
        A(f"v_cvt_pk_bf16_f32 v{154+2*nt}, v{a}, v{a+1}")
        A(f"v_cvt_pk_bf16_f32 v{155+2*nt}, v{a+2}, v{a+3}")
        A(f"buffer_store_dwordx2 {v(154+2*nt,2)}, v224, s[16:19], s46 offen offset:{nt*32}")
    A.label("L_fin_end")
    A("s_endpgm")

def main(path):
    A = Asm()
    hdr = f"""; LN -> [QKV | gate,up] GEMM -> attention -> output GEMM  (generated by gen/gen1.py, hand-designed)
; @launch kernel=ln_kernel grid=(256,1,1) block=(256,1,1) lds=0
; @launch kernel=gemm1_kernel grid=(624,1,1) block=(256,1,1) lds={NST*32768}
; @launch kernel=att_kernel grid=(256,1,1) block=(512,1,1) lds=81920
; @launch kernel=fin_kernel grid=(256,1,1) block=(256,1,1) lds={4*FD*5120}
.amdgcn_target "amdgcn-amd-amdhsa--gfx950"
.text
"""
    gen_ln(A)
    gen_gemm1(A)
    gen_att(A)
    gen_fin(A)
    out = hdr + A.text() + '.section .rodata,"a"\n'
    out += kernel_desc("ln_kernel", 48) + kernel_desc("gemm1_kernel", 108) + kernel_desc("att_kernel", 124) + kernel_desc("fin_kernel", 240)
    open(path, "w").write(out)

if __name__ == "__main__":
    main(sys.argv[1] if len(sys.argv) > 1 else f"cdna_kernels/{NAME}.s")
```

```python
import math, sys
from asmlib import *

NAME = "parallel_sum__softmax_full_mha__swiglu_ffn__prompt"
XN_OFF = 0
Q_OFF = 0x280000
KV_OFF = 0x500000
AH_OFF = 0xA00000
AH_SIZE = 128 * 68 * 1024
QSCALE = math.log2(math.e) / math.sqrt(20.0)
import struct
def fbits(x): return struct.unpack("<I", struct.pack("<f", x))[0]

import os
DIAG = os.environ.get("DIAG", "0") == "1"
def stamp_begin(A):
    if not DIAG: return
    A("s_memtime s[80:81]")
    A("s_memrealtime s[82:83]")
    A("s_load_dwordx2 s[88:89], s[0:1], 64")
    A("s_mov_b32 s90, s2")
    A("s_waitcnt lgkmcnt(0)")
def stamp_end(A, tag):
    if not DIAG: return
    A("s_waitcnt vmcnt(0) lgkmcnt(0)")
    A("s_memtime s[84:85]")
    A("s_memrealtime s[86:87]")
    A("s_waitcnt lgkmcnt(0)")
    A("s_sub_u32 s84, s84, s80")
    A("s_sub_u32 s86, s86, s82")
    A("s_lshr_b32 s91, s90, 5")
    A("s_and_b32 s90, s90, 31")
    A("s_cmp_lg_u32 s90, 0")
    A(f"s_cbranch_scc1 L_st_{tag}")
    A("s_lshl_b32 s91, s91, 3")
    A("s_mov_b32 s90, 256")
    A("s_mov_b32 s92, s88")
    A("s_mov_b32 s93, s89")
    A("s_mov_b32 s94, 256")
    A("s_mov_b32 s95, 0x00020000")
    A("s_mov_b64 exec, 1")
    A("v_mov_b32 v0, s84")
    A("v_mov_b32 v1, s86")
    A("v_mov_b32 v2, s91")
    A("buffer_store_dwordx2 v[0:1], v2, s[92:95], 0 offen")
    A.label(f"L_st_{tag}")
_tag = [0]
def endpgm(A):
    _tag[0] += 1
    stamp_end(A, _tag[0])
    A("s_endpgm")

def wave_sum(A, r, t):
    for m in ("quad_perm:[1,0,3,2]", "quad_perm:[2,3,0,1]", "row_half_mirror", "row_mirror"):
        A("s_nop 1")
        A(f"v_add_f32_dpp v{r}, v{r}, v{r} {m} row_mask:0xf bank_mask:0xf")
    for p in ("v_permlane16_swap_b32", "v_permlane32_swap_b32"):
        A(f"v_mov_b32 v{t}, v{r}")
        A("s_nop 1")
        A(f"{p} v{r}, v{t}")
        A("s_nop 1")
        A(f"v_add_f32 v{r}, v{r}, v{t}")

def gen_ln(A):
    kernel_begin(A, "ln_kernel")
    A("s_cmp_ge_u32 s2, 256")
    A("s_cbranch_scc1 L_ln_end")
    stamp_begin(A)
    A("s_load_dwordx2 s[4:5], s[0:1], 0")
    A("s_load_dwordx2 s[6:7], s[0:1], 72")
    A("v_lshrrev_b32 v1, 6, v0")
    A("v_and_b32 v2, 63, v0")
    A("v_mul_u32_u24 v1, 2560, v1")
    A("v_lshl_add_u32 v1, v2, 2, v1")
    A("s_mul_i32 s3, s2, 10240")
    A("s_waitcnt lgkmcnt(0)")
    srd(A, 8, 4, 2621440)
    srd(A, 12, 6, 2621440, XN_OFF)
    for r in range(2):
        for i in range(5):
            A(f"buffer_load_dword v{10+r*5+i}, v1, s[8:11], s3 offen offset:{r*1280+i*256}")
    A("s_waitcnt vmcnt(0)")
    for r in range(2):
        b = 20 + r * 10
        for i in range(5):
            A(f"v_lshlrev_b32 v{b+2*i}, 16, v{10+r*5+i}")
            A(f"v_and_b32 v{b+2*i+1}, 0xffff0000, v{10+r*5+i}")
        A(f"v_add_f32 v40, v{b}, v{b+1}")
        for i in range(2, 10):
            A(f"v_add_f32 v40, v40, v{b+i}")
        wave_sum(A, 40, 41)
        A(f"v_mul_f32 v40, {hex(fbits(1.0/640))}, v40")
        for i in range(10):
            A(f"v_sub_f32 v{b+i}, v{b+i}, v40")
        A(f"v_mul_f32 v42, v{b}, v{b}")
        for i in range(1, 10):
            A(f"v_fmac_f32 v42, v{b+i}, v{b+i}")
        wave_sum(A, 42, 41)
        A(f"v_mov_b32 v43, {hex(fbits(1e-5))}")
        A(f"v_fmac_f32 v43, {hex(fbits(1.0/640))}, v42")
        A("v_rsq_f32 v43, v43")
        A("s_nop 0")
        for i in range(10):
            A(f"v_mul_f32 v{b+i}, v{b+i}, v43")
        for i in range(5):
            A(f"v_cvt_pk_bf16_f32 v{10+r*5+i}, v{b+2*i}, v{b+2*i+1}")
            A(f"buffer_store_dword v{10+r*5+i}, v1, s[12:15], s3 offen offset:{r*1280+i*256}")
    endpgm(A)
    A.label("L_ln_end")
    A("s_endpgm")

NST = 2
def gemm_stage_dma(A, slot):
    for jj in range(4):
        A(f"s_add_u32 m0, s29, {slot*32768 + jj*4096}")
        if jj:
            A(f"s_add_u32 s30, s24, {jj*40960}")
        else:
            A("s_nop 0")
        A(f"buffer_load_dwordx4 v101, s[4:7], {'s30' if jj else 's24'} offen lds")
    for st in range(2):
        for jj in range(2):
            A(f"s_add_u32 m0, s29, {slot*32768 + 16384 + st*8192 + jj*4096}")
            if jj:
                A(f"s_add_u32 s30, s{25+st}, s27")
            else:
                A("s_nop 0")
            A(f"buffer_load_dwordx4 v102, s[{8+4*st}:{11+4*st}], {'s30' if jj else f's{25+st}'} offen lds")
    A("s_add_u32 s24, s24, 128")
    A("s_add_u32 s25, s25, s28")
    A("s_add_u32 s26, s26, s28")

def gemm_frag_reads(A, slot, ks, buf):
    fb = 64 + 16 * buf
    for tm in range(2):
        A(f"ds_read_b128 {v(fb+4*tm,4)}, v{96+ks} offset:{slot*32768 + tm*4096}")
    for st in range(2):
        for rd in range(2):
            A(f"ds_read_b64_tr_b16 {v(fb+8+4*st+2*rd,2)}, v100 offset:{slot*32768 + 16384 + st*8192 + (16*ks+4*rd)*128}")

def gemm_loop(A, transposed):
    for kt in range(10):
        slot = kt % NST
        inflight = min(NST - 2, 9 - kt) if kt else NST - 2
        A(f"s_waitcnt vmcnt({8*max(0,min(NST-2, 9-kt))})")
        A("s_barrier")
        gemm_frag_reads(A, slot, 0, 0)
        if kt + NST - 1 < 10:
            gemm_stage_dma(A, (kt + NST - 1) % NST)
        for ks in range(4):
            if ks < 3:
                gemm_frag_reads(A, slot, ks + 1, (ks + 1) & 1)
                A("s_waitcnt lgkmcnt(6)")
            else:
                A("s_waitcnt lgkmcnt(0)")
            fb = 64 + 16 * (ks & 1)
            for tm in range(2):
                for st in range(2):
                    acc = v(16 * (2 * tm + st), 16)
                    xa, wa = v(fb + 4 * tm, 4), v(fb + 8 + 4 * st, 4)
                    c = "0" if (kt == 0 and ks == 0) else acc
                    if transposed:
                        A(f"v_mfma_f32_32x32x16_bf16 {acc}, {wa}, {xa}, {c}")
                    else:
                        A(f"v_mfma_f32_32x32x16_bf16 {acc}, {xa}, {wa}, {c}")
    A("s_nop 15")

def gen_gemm1(A):
    kernel_begin(A, "gemm1_kernel")
    A("s_cmp_ge_u32 s2, 624")
    A("s_cbranch_scc1 L_g1_end")
    stamp_begin(A)
    A("s_load_dwordx2 s[34:35], s[0:1], 8")
    A("s_load_dwordx4 s[36:39], s[0:1], 32")
    A("s_load_dwordx2 s[40:41], s[0:1], 72")
    A("v_lshrrev_b32 v1, 6, v0")
    A("v_and_b32 v103, 63, v0")
    A("v_readfirstlane_b32 s20, v1")
    A("s_lshl_b32 s29, s20, 10")
    A("s_lshr_b32 s21, s20, 1")
    A("s_and_b32 s22, s20, 1")
    A("s_cmp_ge_u32 s2, 240")
    A("s_cselect_b32 s23, 240, 0")
    A("s_mov_b32 s33, 3840")
    A("s_cmov_b32 s33, 3072")
    A("s_sub_u32 s23, s2, s23")
    A("s_and_b32 s31, s23, 15")
    A("s_lshr_b32 s32, s23, 4")
    A("s_lshl_b32 s27, s33, 5")
    A("s_lshl_b32 s28, s33, 6")
    A("s_mul_i32 s24, s31, 163840")
    A("v_lshrrev_b32 v2, 3, v103")
    A("v_lshl_add_u32 v2, v1, 3, v2")
    A("v_lshrrev_b32 v3, 4, v103")
    A("v_and_b32 v4, 1, v1")
    A("v_lshl_add_u32 v4, v4, 2, v3")
    A("v_and_b32 v5, 7, v103")
    A("v_xor_b32 v4, v4, v5")
    A("v_lshlrev_b32 v4, 4, v4")
    A("v_mul_u32_u24 v101, 1280, v2")
    A("v_add_u32 v101, v101, v4")
    A("v_and_b32 v3, 1, v3")
    A("v_lshlrev_b32 v3, 2, v3")
    A("v_xor_b32 v3, v3, v5")
    A("v_lshlrev_b32 v3, 4, v3")
    A("v_mul_u32_u24 v102, s33, v2")
    A("v_add_u32 v102, v102, v3")
    A("v_and_b32 v104, 31, v103")
    A("v_lshrrev_b32 v105, 5, v103")
    A("s_lshl_b32 s30, s21, 13")
    A("v_lshl_add_u32 v2, v104, 7, s30")
    A("v_bfe_u32 v3, v103, 1, 3")
    A("v_xor_b32 v3, v3, v105")
    for ks in range(4):
        A(f"v_xor_b32 v4, {2*ks}, v3")
        A(f"v_lshl_add_u32 v{96+ks}, v4, 4, v2")
    A("v_bfe_u32 v2, v103, 2, 2")
    A("v_lshl_add_u32 v2, v105, 3, v2")
    A("v_lshlrev_b32 v2, 7, v2")
    A("v_bfe_u32 v3, v103, 4, 1")
    A("v_lshlrev_b32 v3, 5, v3")
    A("v_and_b32 v4, 3, v103")
    A("v_lshl_add_u32 v3, v4, 3, v3")
    A("v_bfe_u32 v4, v103, 3, 1")
    A("v_xor_b32 v4, s22, v4")
    A("v_lshl_add_u32 v3, v4, 6, v3")
    A("v_add_u32 v100, v2, v3")
    A("s_waitcnt lgkmcnt(0)")
    srd(A, 4, 40, 2621440, XN_OFF)
    A("s_cmp_ge_u32 s2, 240")
    A("s_cbranch_scc1 L_g1_gu_setup")
    srd(A, 8, 34, 640 * 3840)
    srd(A, 12, 34, 640 * 3840)
    A("s_lshl_b32 s25, s32, 8")
    A("s_add_u32 s26, s25, 128")
    A("s_branch L_g1_go")
    A.label("L_g1_gu_setup")
    srd(A, 8, 36, 640 * 3072)
    srd(A, 12, 38, 640 * 3072)
    A("s_lshl_b32 s25, s32, 7")
    A("s_mov_b32 s26, s25")
    A.label("L_g1_go")
    for p in range(NST - 1):
        gemm_stage_dma(A, p)
    A("s_lshl_b32 s42, s31, 2")
    A("s_lshl_b32 s43, s21, 1")
    A("s_add_u32 s42, s42, s43")
    A("s_cmp_ge_u32 s2, 240")
    A("s_cbranch_scc1 L_g1_T")
    A("s_cmp_ge_u32 s32, 10")
    A("s_cbranch_scc1 L_g1_V")
    A.label("L_g1_T")
    gemm_loop(A, True)
    A("s_cmp_ge_u32 s2, 240")
    A("s_cbranch_scc1 L_g1_epi_gu")
    A("s_cmp_ge_u32 s32, 5")
    A(f"s_mov_b32 s44, {Q_OFF}")
    A(f"s_cmov_b32 s44, {KV_OFF}")
    A("s_mov_b32 s45, 81920")
    A("s_cmov_b32 s45, 163840")
    A("s_mov_b32 s46, 1280")
    A("s_cmov_b32 s46, 2560")
    A(f"s_cselect_b32 s47, 1.0, {hex(fbits(QSCALE))}")
    A("s_cselect_b32 s48, 160, 0")
    A("s_mov_b32 s18, 2621440")
    A("s_cmov_b32 s18, 5242880")
    A("s_add_u32 s16, s40, s44")
    A("s_addc_u32 s17, s41, 0")
    A("s_mov_b32 s19, 0x00020000")
    A("s_lshl_b32 s49, s32, 5")
    A("s_sub_u32 s49, s49, s48")
    A("s_lshl_b32 s50, s22, 3")
    A("s_add_u32 s49, s49, s50")
    A("s_mul_i32 s50, s42, s46")
    A("s_add_u32 s51, s50, s46")
    A("v_add_u32 v64, s49, v105")
    A("v_lshlrev_b32 v65, 4, v104")
    for st in range(2):
        for q in range(4):
            A(f"v_add_u32 v66, {st*16+2*q}, v64")
            A("v_mul_u32_u24 v67, 205, v66")
            A("v_lshrrev_b32 v67, 10, v67")
            A("v_mul_u32_u24 v68, 5, v67")
            A("v_sub_u32 v66, v66, v68")
            A("v_lshrrev_b32 v68, 2, v66")
            A("v_lshrrev_b32 v68, v68, v65")
            A("v_mad_u32_u24 v68, v67, s45, v68")
            A("v_lshrrev_b32 v67, 1, v66")
            A("v_lshl_add_u32 v68, v67, 9, v68")
            A("v_and_b32 v67, 1, v66")
            A("v_lshl_add_u32 v68, v67, 3, v68")
            for tm in range(2):
                a = 16 * (2 * tm + st) + 4 * q
                d = 70 + 2 * tm
                for i in range(4):
                    A(f"v_mul_f32 v{a+i}, s47, v{a+i}")
                A(f"v_cvt_pk_bf16_f32 v{d}, v{a}, v{a+1}")
                A(f"v_cvt_pk_bf16_f32 v{d+1}, v{a+2}, v{a+3}")
                A(f"buffer_store_dwordx2 {v(d,2)}, v68, s[16:19], s{50+tm} offen")
    endpgm(A)
    A.label("L_g1_epi_gu")
    srd(A, 16, 40, AH_SIZE, AH_OFF)
    A("v_bfe_u32 v64, v103, 4, 1")
    A("v_mul_u32_u24 v64, 69632, v64")
    A("v_lshl_add_u32 v64, v105, 8, v64")
    A("v_and_b32 v65, 15, v103")
    A("v_lshl_add_u32 v64, v65, 4, v64")
    A("s_mul_i32 s50, s42, 139264")
    A("s_lshl_b32 s51, s32, 1")
    A("s_add_u32 s51, s51, s22")
    A("s_add_u32 s51, s51, 20")
    A("s_lshl_b32 s51, s51, 10")
    A("s_add_u32 s50, s50, s51")
    A("s_add_u32 s51, s50, 139264")
    A(f"s_mov_b32 s47, {hex(fbits(-math.log2(math.e)))}")
    for tm in range(2):
        g, u = 32 * tm, 32 * tm + 16
        for half in range(2):
            t = 68
            for i in range(8):
                A(f"v_mul_f32 v{t+i}, s47, v{g+8*half+i}")
            for i in range(8):
                A(f"v_exp_f32 v{t+i}, v{t+i}")
            for i in range(8):
                A(f"v_mul_f32 v{g+8*half+i}, v{g+8*half+i}, v{u+8*half+i}")
            for i in range(8):
                A(f"v_add_f32 v{t+i}, 1.0, v{t+i}")
            for i in range(8):
                A(f"v_rcp_f32 v{t+i}, v{t+i}")
            A("s_nop 0")
            for i in range(8):
                A(f"v_mul_f32 v{t+i}, v{t+i}, v{g+8*half+i}")
            d = 80 + 4 * (2 * tm + half)
            for i in range(4):
                A(f"v_cvt_pk_bf16_f32 v{d+i}, v{t+2*i}, v{t+2*i+1}")
            A(f"buffer_store_dwordx4 {v(d,4)}, v64, s[16:19], s{50+tm} offen offset:{half*512}")
    endpgm(A)
    A.label("L_g1_V")
    gemm_loop(A, False)
    srd(A, 16, 40, 5242880, KV_OFF)
    A("s_lshl_b32 s49, s32, 7")
    A("s_sub_u32 s49, s49, 1280")
    A("s_lshl_b32 s50, s22, 5")
    A("s_add_u32 s49, s49, s50")
    A("s_mul_i32 s50, s42, 2560")
    A("s_add_u32 s51, s50, 2560")
    A("s_mov_b32 s45, 163840")
    A("v_mul_u32_u24 v65, 320, v105")
    for st in range(2):
        A(f"v_add_u32 v66, s49, v104")
        if st:
            A("v_add_u32 v66, 64, v66")
        A("v_mul_u32_u24 v67, 3277, v66")
        A("v_lshrrev_b32 v67, 16, v67")
        A("v_mul_u32_u24 v68, 20, v67")
        A("v_sub_u32 v66, v66, v68")
        A("v_lshl_add_u32 v68, v66, 4, v65")
        A(f"v_mad_u32_u24 v{64 if st else 69}, v67, s45, v68")
        va = 64 if st else 69
        for tm in range(2):
            for mf in range(2):
                a = 16 * (2 * tm + st) + 8 * mf
                d = 72 + 4 * (mf + 2 * tm + 4 * st)
                if d + 3 > 95: d -= 16
                for i in range(4):
                    A(f"v_cvt_pk_bf16_f32 v{d+i}, v{a+2*i}, v{a+2*i+1}")
                A(f"buffer_store_dwordx4 {v(d,4)}, v{va}, s[16:19], s{50+tm} offen offset:{1280+mf*640}")
    endpgm(A)
    A.label("L_g1_end")
    A("s_endpgm")

S_ = [0, 16]; NEGM = 32; OACC = 48; P_ = 64
KA = [72, 76]; KB = [80, 82]; VF = [84, 92]; QA = 100; QB = 104
vKA, vKB, vV = 106, 107, 108
M_OFFSET = 80.0

def att_out(A):
    A("v_rcp_f32 v110, v110")
    A("s_nop 0")
    for i in range(12):
        A(f"v_mul_f32 v{OACC+i}, v{OACC+i}, v110")
    for q in range(3):
        A(f"v_add_u32 v111, s41, v122" if q == 0 else f"v_add_u32 v111, 2, v111")
        A("v_lshrrev_b32 v112, 3, v111")
        A("v_lshl_add_u32 v112, v112, 10, v109")
        A("v_bfe_u32 v113, v111, 2, 1")
        A("v_lshl_add_u32 v112, v113, 9, v112")
        A("v_and_b32 v113, 1, v111")
        A("v_lshl_add_u32 v112, v113, 8, v112")
        A("v_bfe_u32 v113, v111, 1, 1")
        A("v_lshl_add_u32 v112, v113, 3, v112")
        A(f"v_cvt_pk_bf16_f32 v{114+2*q}, v{OACC+4*q}, v{OACC+4*q+1}")
        A(f"v_cvt_pk_bf16_f32 v{115+2*q}, v{OACC+4*q+2}, v{OACC+4*q+3}")
        if q == 2:
            A("s_mov_b32 exec_hi, 0")
        A(f"buffer_store_dwordx2 {v(114+2*q,2)}, v112, s[16:19], s40 offen")
    endpgm(A)

def att_dma(A, slot):
    for i in range(5):
        A(f"s_add_u32 m0, s29, {slot*40960 + i*8192}")
        A(f"s_add_u32 s30, s24, {i*8192}")
        A("buffer_load_dwordx4 v120, s[4:7], s30 offen lds")
    A("s_add_u32 s24, s24, 40960")

def gen_att(A):
    kernel_begin(A, "att_kernel")
    A("s_cmp_ge_u32 s2, 256")
    A("s_cbranch_scc1 L_att_end")
    stamp_begin(A)
    A("s_load_dwordx2 s[34:35], s[0:1], 72")
    A("v_lshrrev_b32 v1, 6, v0")
    A("v_and_b32 v119, 63, v0")
    A("v_readfirstlane_b32 s20, v1")
    A("v_lshlrev_b32 v120, 4, v119")
    A("v_and_b32 v121, 31, v119")
    A("v_lshrrev_b32 v122, 5, v119")
    A("s_and_b32 s21, s2, 7")
    A("s_lshl_b32 s21, s21, 2")
    A("s_bfe_u32 s22, s2, 0x20003")
    A("s_add_u32 s21, s21, s22")
    A("s_lshr_b32 s22, s2, 5")
    A("s_lshl_b32 s22, s22, 3")
    A("s_add_u32 s22, s22, s20")
    A("s_lshl_b32 s29, s20, 10")
    A("s_mul_i32 s23, s21, 163840")
    A("s_add_u32 s24, s23, s29")
    A("s_waitcnt lgkmcnt(0)")
    srd(A, 4, 34, 5242880, KV_OFF)
    srd(A, 8, 34, 2621440, Q_OFF)
    srd(A, 16, 34, AH_SIZE, AH_OFF)
    A("s_lshl_b32 s30, s21, 6")
    A("s_add_u32 s30, s30, s22")
    A("s_mul_i32 s30, s30, 1280")
    A("v_lshlrev_b32 v2, 3, v121")
    A("v_lshl_add_u32 v2, v122, 30, v2")
    A(f"buffer_load_dwordx4 {v(QA,4)}, v120, s[8:11], s30 offen")
    A(f"buffer_load_dwordx2 {v(QB,2)}, v2, s[8:11], s30 offen offset:1024")
    att_dma(A, 0)
    att_dma(A, 1)
    A(f"v_mov_b32 v{vKA}, v120")
    A(f"v_lshlrev_b32 v{vKB}, 3, v121")
    A(f"v_mul_u32_u24 v{vV}, 320, v122")
    A(f"v_lshl_add_u32 v{vV}, v121, 4, v{vV}")
    A("v_cmp_gt_u32 s[36:37], 20, v121")
    A("v_cmp_eq_u32 vcc, 20, v121")
    A("v_mov_b32 v3, 0x3f803f80")
    A("s_nop 0")
    A("v_cndmask_b32 v3, 0, v3, vcc")
    for i in range(16):
        A(f"v_mov_b32 v{VF[0]+i}, v3")
    for i in range(16):
        A(f"v_mov_b32 v{OACC+i}, 0")
    A("s_mul_i32 s41, s21, 5")
    A("s_mul_i32 s40, s22, 139264")
    A("v_bfe_u32 v109, v119, 4, 1")
    A("v_mul_u32_u24 v109, 69632, v109")
    A("v_and_b32 v2, 15, v119")
    A("v_lshl_add_u32 v109, v2, 4, v109")
    A("s_waitcnt vmcnt(5)")
    A("s_barrier")
    for t in range(4):
        A(f"ds_read_b128 {v(KA[t&1],4)}, v{vKA} offset:{t*2560}")
        A(f"ds_read_b64 {v(KB[t&1],2)}, v{vKB} offset:{t*2560+1024}")
        A("s_waitcnt lgkmcnt(0)")
        sb = S_[t & 1]
        A(f"v_mfma_f32_32x32x16_bf16 {v(sb,16)}, {v(KA[t&1],4)}, {v(QA,4)}, 0")
        A("s_nop 9")
        A(f"v_mfma_f32_32x32x8bf16_1k {v(sb,16)}, {v(KB[t&1],2)}, {v(QB,2)}, {v(sb,16)}")
        A("s_nop 11")
        for i in range(8):
            if t == 0 and i == 0:
                A(f"v_max_f32 v110, v{sb}, v{sb+1}")
            else:
                A(f"v_max3_f32 v110, v110, v{sb+2*i}, v{sb+2*i+1}")
    A("v_mov_b32 v111, v110")
    A("s_nop 1")
    A("v_permlane32_swap_b32 v110, v111")
    A("s_nop 1")
    A("v_max_f32 v110, v110, v111")
    A(f"v_sub_f32 v110, {hex(fbits(-M_OFFSET))}, v110")
    for i in range(16):
        A(f"v_mov_b32 v{NEGM+i}, v110")
    A(f"ds_read_b128 {v(KA[0],4)}, v{vKA}")
    A(f"ds_read_b64 {v(KB[0],2)}, v{vKB} offset:1024")
    A(f"ds_read_b128 {v(KA[1],4)}, v{vKA} offset:2560")
    A(f"ds_read_b64 {v(KB[1],2)}, v{vKB} offset:{2560+1024}")
    A("s_mov_b64 exec, s[36:37]")
    A(f"ds_read_b128 {v(VF[0],4)}, v{vV} offset:1280")
    A(f"ds_read_b128 {v(VF[0]+4,4)}, v{vV} offset:1920")
    A("s_mov_b64 exec, -1")
    A("s_waitcnt lgkmcnt(4)")
    A(f"v_mfma_f32_32x32x16_bf16 {v(S_[0],16)}, {v(KA[0],4)}, {v(QA,4)}, {v(NEGM,16)}")
    A("s_nop 9")
    A(f"v_mfma_f32_32x32x8bf16_1k {v(S_[0],16)}, {v(KB[0],2)}, {v(QB,2)}, {v(S_[0],16)}")
    for i in range(4):
        A(f"v_mov_b32 v{P_+4+i}, 0")
    A("s_nop 7")
    A("s_mov_b32 s42, 0")
    A("s_mov_b32 s43, 40960")
    A.raw(".p2align 6")
    A.label("L_att_loop")
    for t in range(16):
        cur, nxt = S_[t & 1], S_[(t + 1) & 1]
        A("s_waitcnt lgkmcnt(0)")
        if t == 14:
            A("s_waitcnt vmcnt(0)")
            A("s_barrier")
            A(f"v_add_u32 v{vKA}, s43, v{vKA}")
            A(f"v_add_u32 v{vKB}, s43, v{vKB}")
        if t == 15:
            A(f"v_add_u32 v{vV}, s43, v{vV}")
            A("s_barrier")
            A("s_cmp_ge_u32 s42, 2")
            A(f"s_cbranch_scc1 L_att_nodma")
            A("s_mul_i32 s44, s42, 40960")
            A("s_add_u32 s44, s44, s29")
            for i in range(5):
                A(f"s_add_u32 m0, s44, {i*8192}")
                A(f"s_add_u32 s30, s24, {i*8192}")
                A("buffer_load_dwordx4 v120, s[4:7], s30 offen lds")
            A("s_add_u32 s24, s24, 40960")
            A.label("L_att_nodma")
        tk = (t + 2) & 15
        tv = (t + 1) & 15
        A(f"ds_read_b128 {v(KA[t&1],4)}, v{vKA} offset:{tk*2560}")
        A(f"v_mfma_f32_32x32x16_bf16 {v(OACC,16)}, {v(VF[(t+1)&1]+4,4)}, {v(P_+4,4)}, {v(OACC,16)}")
        A(f"ds_read_b64 {v(KB[t&1],2)}, v{vKB} offset:{tk*2560+1024}")
        A("s_mov_b64 exec, s[36:37]")
        A(f"ds_read_b128 {v(VF[(t+1)&1],4)}, v{vV} offset:{tv*2560+1280}")
        A(f"ds_read_b128 {v(VF[(t+1)&1]+4,4)}, v{vV} offset:{tv*2560+1920}")
        A("s_mov_b64 exec, -1")
        A(f"v_mfma_f32_32x32x16_bf16 {v(nxt,16)}, {v(KA[(t+1)&1],4)}, {v(QA,4)}, {v(NEGM,16)}")
        for i in range(8):
            A(f"v_exp_f32 v{cur+i}, v{cur+i}")
        for i in range(4):
            A(f"v_cvt_pk_bf16_f32 v{P_+i}, v{cur+2*i}, v{cur+2*i+1}")
        A(f"v_mfma_f32_32x32x8bf16_1k {v(nxt,16)}, {v(KB[(t+1)&1],2)}, {v(QB,2)}, {v(nxt,16)}")
        for i in range(8, 12):
            A(f"v_exp_f32 v{cur+i}, v{cur+i}")
        A(f"v_mfma_f32_32x32x16_bf16 {v(OACC,16)}, {v(VF[t&1],4)}, {v(P_,4)}, {v(OACC,16)}")
        for i in range(12, 16):
            A(f"v_exp_f32 v{cur+i}, v{cur+i}")
        for i in range(4, 8):
            A(f"v_cvt_pk_bf16_f32 v{P_+i}, v{cur+2*i}, v{cur+2*i+1}")
    A("s_sub_u32 s43, 0, s43")
    A("s_add_u32 s42, s42, 1")
    A("s_cmp_lt_u32 s42, 4")
    A("s_cbranch_scc1 L_att_loop")
    A(f"v_mfma_f32_32x32x16_bf16 {v(OACC,16)}, {v(VF[1]+4,4)}, {v(P_+4,4)}, {v(OACC,16)}")
    A("s_waitcnt lgkmcnt(0)")
    A("s_nop 11")
    A(f"v_mov_b32 v111, v{OACC+8}")
    A(f"v_mov_b32 v110, v{OACC+8}")
    A("s_nop 1")
    A("v_permlane32_swap_b32 v111, v110")
    A("s_mov_b32 s45, 0x1f8")
    A(f"s_mov_b32 s46, {hex(fbits(2.0**100))}")
    A("v_cmp_ge_f32 s[38:39], s46, v110")
    for i in range(12):
        A(f"v_cmp_class_f32_e64 vcc, v{OACC+i}, s45")
        A("s_and_b64 s[38:39], s[38:39], vcc")
    A("s_cmp_eq_u64 s[38:39], -1")
    A("s_cbranch_scc0 L_att_slow")
    A.label("L_att_fin")
    att_out(A)
    A.label("L_att_slow")
    A("v_lshlrev_b32 v106, 3, v121")
    A("v_mul_u32_u24 v108, 320, v122")
    A("v_lshl_add_u32 v108, v121, 4, v108")
    A("v_mov_b32 v110, 0xff800000")
    A("s_mov_b32 s42, s23")
    A("s_add_u32 s43, s23, 163840")
    A.label("L_att_slow1")
    A(f"buffer_load_dwordx4 {v(KA[0],4)}, v120, s[4:7], s42 offen")
    A(f"buffer_load_dwordx2 {v(KB[0],2)}, v106, s[4:7], s42 offen offset:1024")
    A("s_waitcnt vmcnt(0)")
    A(f"v_mfma_f32_32x32x16_bf16 {v(0,16)}, {v(KA[0],4)}, {v(QA,4)}, 0")
    A("s_nop 9")
    A(f"v_mfma_f32_32x32x8bf16_1k {v(0,16)}, {v(KB[0],2)}, {v(QB,2)}, {v(0,16)}")
    A("s_nop 11")
    for i in range(8):
        A(f"v_max3_f32 v110, v110, v{2*i}, v{2*i+1}")
    A("s_add_u32 s42, s42, 2560")
    A("s_cmp_lt_u32 s42, s43")
    A("s_cbranch_scc1 L_att_slow1")
    A("v_mov_b32 v111, v110")
    A("s_nop 1")
    A("v_permlane32_swap_b32 v110, v111")
    A("s_nop 1")
    A("v_max_f32 v110, v110, v111")
    A("v_sub_f32 v110, 0, v110")
    for i in range(16):
        A(f"v_mov_b32 v{NEGM+i}, v110")
        A(f"v_mov_b32 v{OACC+i}, 0")
    A("s_mov_b32 s42, s23")
    A.label("L_att_slow2")
    A(f"buffer_load_dwordx4 {v(KA[0],4)}, v120, s[4:7], s42 offen")
    A(f"buffer_load_dwordx2 {v(KB[0],2)}, v106, s[4:7], s42 offen offset:1024")
    A("s_mov_b64 exec, s[36:37]")
    A(f"buffer_load_dwordx4 {v(VF[0],4)}, v108, s[4:7], s42 offen offset:1280")
    A(f"buffer_load_dwordx4 {v(VF[0]+4,4)}, v108, s[4:7], s42 offen offset:1920")
    A("s_mov_b64 exec, -1")
    A("s_waitcnt vmcnt(0)")
    A(f"v_mfma_f32_32x32x16_bf16 {v(0,16)}, {v(KA[0],4)}, {v(QA,4)}, {v(NEGM,16)}")
    A("s_nop 9")
    A(f"v_mfma_f32_32x32x8bf16_1k {v(0,16)}, {v(KB[0],2)}, {v(QB,2)}, {v(0,16)}")
    A("s_nop 11")
    for i in range(16):
        A(f"v_exp_f32 v{i}, v{i}")
    for i in range(8):
        A(f"v_cvt_pk_bf16_f32 v{P_+i}, v{2*i}, v{2*i+1}")
    A("s_nop 1")
    A(f"v_mfma_f32_32x32x16_bf16 {v(OACC,16)}, {v(VF[0],4)}, {v(P_,4)}, {v(OACC,16)}")
    A(f"v_mfma_f32_32x32x16_bf16 {v(OACC,16)}, {v(VF[0]+4,4)}, {v(P_+4,4)}, {v(OACC,16)}")
    A("s_add_u32 s42, s42, 2560")
    A("s_cmp_lt_u32 s42, s43")
    A("s_cbranch_scc1 L_att_slow2")
    A("s_nop 11")
    A(f"v_mov_b32 v111, v{OACC+8}")
    A(f"v_mov_b32 v110, v{OACC+8}")
    A("s_nop 1")
    A("v_permlane32_swap_b32 v111, v110")
    A("s_nop 1")
    A("s_branch L_att_fin")
    A.label("L_att_end")
    A("s_endpgm")

FD = 6
def fin_issue(A, step):
    slot = step % FD
    srdw = "s[8:11]" if step < 5 else "s[12:15]"
    sw = "s24" if step < 5 else "s25"
    for j in range(5):
        A(f"s_add_u32 m0, s29, {slot*5120 + j*1024}")
        A("s_nop 0")
        A(f"buffer_load_dwordx4 v{216+j}, {srdw}, {sw} offen lds")
    A(f"s_add_u32 {sw}, {sw}, 40960")
    if step == 5:
        for u in range(4):
            A(f"s_add_u32 s{30+u}, s{30+u}, s34")
    for u in range(4):
        A(f"buffer_load_dwordx4 {v(80+16*slot+4*u,4)}, v221, s[4:7], s{30+u} offen")
        A(f"s_add_u32 s{30+u}, s{30+u}, 1024")

def fin_trreads(A, step):
    slot = step % FD
    b = 176 + 20 * (step & 1)
    for nt in range(5):
        for rd in range(2):
            A(f"ds_read_b64_tr_b16 {v(b+4*nt+2*rd,2)}, v222 offset:{slot*5120 + rd*1280 + nt*32}")

def gen_fin(A):
    kernel_begin(A, "fin_kernel")
    A("s_cmp_ge_u32 s2, 256")
    A("s_cbranch_scc1 L_fin_end")
    stamp_begin(A)
    A("s_load_dwordx2 s[36:37], s[0:1], 0")
    A("s_load_dwordx2 s[38:39], s[0:1], 16")
    A("s_load_dwordx4 s[40:43], s[0:1], 48")
    A("s_load_dwordx2 s[44:45], s[0:1], 72")
    A("v_lshrrev_b32 v1, 6, v0")
    A("v_and_b32 v223, 63, v0")
    A("v_readfirstlane_b32 s20, v1")
    A("s_and_b32 s21, s2, 7")
    A("s_lshl_b32 s21, s21, 2")
    A("s_bfe_u32 s22, s2, 0x20003")
    A("s_add_u32 s21, s21, s22")
    A("s_lshr_b32 s22, s2, 5")
    A("s_mul_i32 s29, s20, 30720")
    A("s_mul_i32 s23, s22, 160")
    A("s_mul_i32 s24, s20, 204800")
    A("s_add_u32 s24, s24, s23")
    A("s_mul_i32 s25, s20, 491520")
    A("s_add_u32 s25, s25, s23")
    for u in range(4):
        A(f"s_add_u32 s{30+u}, s20, {u}")
        A(f"s_and_b32 s{30+u}, s{30+u}, 3")
        A(f"s_lshl_b32 s35, s21, 2")
        A(f"s_add_u32 s{30+u}, s{30+u}, s35")
        A(f"s_mul_i32 s{30+u}, s{30+u}, 68")
        A(f"s_mul_i32 s35, s20, 5")
        A(f"s_add_u32 s{30+u}, s{30+u}, s35")
        A(f"s_lshl_b32 s{30+u}, s{30+u}, 10")
    A("s_mul_i32 s34, s20, 7")
    A("s_add_u32 s34, s34, 15")
    A("s_lshl_b32 s34, s34, 10")
    for j in range(5):
        A(f"v_add_u32 v2, {64*j}, v223")
        A("v_mul_u32_u24 v3, 6554, v2")
        A("v_lshrrev_b32 v3, 16, v3")
        A("v_mul_u32_u24 v4, 10, v3")
        A("v_sub_u32 v2, v2, v4")
        A("v_mul_u32_u24 v3, 1280, v3")
        A(f"v_lshl_add_u32 v{216+j}, v2, 4, v3")
    A("v_lshlrev_b32 v221, 4, v223")
    A("v_lshrrev_b32 v2, 5, v223")
    A("v_lshlrev_b32 v2, 4, v2")
    A("v_bfe_u32 v3, v223, 4, 1")
    A("v_lshl_add_u32 v2, v3, 2, v2")
    A("v_bfe_u32 v3, v223, 2, 2")
    A("v_add_u32 v2, v2, v3")
    A("v_mul_u32_u24 v2, 160, v2")
    A("v_and_b32 v3, 3, v223")
    A("v_lshl_add_u32 v2, v3, 3, v2")
    A("v_add_u32 v222, s29, v2")
    A("v_and_b32 v2, 15, v223")
    A("v_mul_u32_u24 v2, 1280, v2")
    A("v_lshrrev_b32 v3, 4, v223")
    A("v_lshl_add_u32 v224, v3, 3, v2")
    A("s_lshl_b32 s46, s21, 2")
    A("s_add_u32 s46, s46, s20")
    A("s_mul_i32 s46, s46, 20480")
    A("s_add_u32 s46, s46, s23")
    A("s_waitcnt lgkmcnt(0)")
    srd(A, 4, 44, AH_SIZE, AH_OFF)
    srd(A, 8, 38, 640 * 1280)
    srd(A, 12, 40, 1536 * 1280)
    srd(A, 16, 42, 2621440)
    srd(A, 48, 36, 2621440)
    for nt in range(5):
        A(f"buffer_load_dwordx2 {v(226+2*nt,2)}, v224, s[48:51], s46 offen offset:{nt*32}")
    for st in range(FD):
        fin_issue(A, st)
    NS = 17
    A(f"s_waitcnt vmcnt({9*(FD-1)})")
    fin_trreads(A, 0)
    for st in range(NS):
        if st + 1 < NS:
            issued = min(NS, st + FD)
            A(f"s_waitcnt vmcnt({9*(issued - (st+2))})")
            fin_trreads(A, st + 1)
            A("s_waitcnt lgkmcnt(10)")
        else:
            A("s_waitcnt lgkmcnt(0)")
        b = 176 + 20 * (st & 1)
        ab = 80 + 16 * (st % FD)
        for nt in range(5):
            for u in range(4):
                acc = v(4 * (nt * 4 + u), 4)
                A(f"v_mfma_f32_16x16x32_bf16 {acc}, {v(b+4*nt,4)}, {v(ab+4*u,4)}, {'0' if st == 0 else acc}")
        if st + FD < NS:
            fin_issue(A, st + FD)
    A("s_barrier")
    for u in range(1, 4):
        A(f"s_add_u32 s30, s20, {u}")
        A("s_and_b32 s30, s30, 3")
        A("s_mul_i32 s30, s30, 15360")
        A(f"v_add_u32 v80, s30, v221")
        for nt in range(5):
            A(f"ds_write_b128 v80, {v(4*(nt*4+u),4)} offset:{(u-1)*5120 + nt*1024}")
    A("s_mul_i32 s30, s20, 15360")
    A("v_add_u32 v80, s30, v221")
    A("s_waitcnt lgkmcnt(0)")
    A("s_barrier")
    for u in range(3):
        for nt in range(5):
            A(f"ds_read_b128 {v(84+20*u+4*nt,4)}, v80 offset:{u*5120 + nt*1024}")
    for nt in range(5):
        a = 16 * nt
        A(f"v_lshlrev_b32 v150, 16, v{226+2*nt}")
        A(f"v_and_b32 v151, 0xffff0000, v{226+2*nt}")
        A(f"v_lshlrev_b32 v152, 16, v{227+2*nt}")
        A(f"v_and_b32 v153, 0xffff0000, v{227+2*nt}")
        for i in range(4):
            A(f"v_add_f32 v{a+i}, v{a+i}, v{150+i}")
    A("s_waitcnt lgkmcnt(0)")
    for nt in range(5):
        a = 16 * nt
        for u in range(3):
            for i in range(4):
                A(f"v_add_f32 v{a+i}, v{a+i}, v{84+20*u+4*nt+i}")
        A(f"v_cvt_pk_bf16_f32 v{154+2*nt}, v{a}, v{a+1}")
        A(f"v_cvt_pk_bf16_f32 v{155+2*nt}, v{a+2}, v{a+3}")
        A(f"buffer_store_dwordx2 {v(154+2*nt,2)}, v224, s[16:19], s46 offen offset:{nt*32}")
    endpgm(A)
    A.label("L_fin_end")
    A("s_endpgm")

def main(path):
    A = Asm()
    hdr = f"""; LN -> [QKV | gate,up] GEMM -> attention -> output GEMM  (generated by gen/gen1.py, hand-designed)
; @launch kernel=ln_kernel grid=(256,1,1) block=(256,1,1) lds=0
; @launch kernel=gemm1_kernel grid=(624,1,1) block=(256,1,1) lds={NST*32768}
; @launch kernel=att_kernel grid=(256,1,1) block=(512,1,1) lds=81920
; @launch kernel=fin_kernel grid=(256,1,1) block=(256,1,1) lds={4*FD*5120}
.amdgcn_target "amdgcn-amd-amdhsa--gfx950"
.text
"""
    gen_ln(A)
    gen_gemm1(A)
    gen_att(A)
    gen_fin(A)
    out = hdr + A.text() + '.section .rodata,"a"\n'
    out += kernel_desc("ln_kernel", 48) + kernel_desc("gemm1_kernel", 108) + kernel_desc("att_kernel", 124) + kernel_desc("fin_kernel", 240)
    open(path, "w").write(out)

if __name__ == "__main__":
    main(sys.argv[1] if len(sys.argv) > 1 else f"cdna_kernels/{NAME}.s")
```

```python
from asmlib import *
import gen1 as G
from gen1 import fbits, stamp, stamp_begin, endpgm, KV_OFF, Q_OFF, AH_OFF, AH_SIZE

S_ = [0, 16]; OA = [32, 48]; P_ = 64
KA = [72, 76]; KB = [80, 82]; VF = [84, 92]; QA = [100, 104]; QB = [108, 110]
vKA, vKB, vV = 112, 113, 114
vL16, vL31, vH, vLANE, vOUT = 115, 116, 117, 118, 119
T0 = 120
M_OFFSET = 80.0
CH = 20480

def mf16(A, d, a, b, c):
    A(f"v_mfma_f32_32x32x16_bf16 {v(d,16)}, {v(a,4)}, {v(b,4)}, {c if isinstance(c,str) else v(c,16)}")
def mf8(A, d, a, b):
    A(f"v_mfma_f32_32x32x8bf16_1k {v(d,16)}, {v(a,2)}, {v(b,2)}, {v(d,16)}")

def att_out(A):
    O = OA[0]
    A(f"v_rcp_f32 v{T0}, v{T0}")
    A(f"v_add_u32 v{T0+1}, s41, v{vH}")
    for i in range(12):
        A(f"v_mul_f32 v{O+i}, v{O+i}, v{T0}")
    for q in range(3):
        if q:
            A(f"v_add_u32 v{T0+1}, 2, v{T0+1}")
        A(f"v_lshrrev_b32 v{T0+2}, 3, v{T0+1}")
        A(f"v_lshl_add_u32 v{T0+2}, v{T0+2}, 10, v{vOUT}")
        A(f"v_bfe_u32 v{T0+3}, v{T0+1}, 2, 1")
        A(f"v_lshl_add_u32 v{T0+2}, v{T0+3}, 9, v{T0+2}")
        A(f"v_and_b32 v{T0+3}, 1, v{T0+1}")
        A(f"v_lshl_add_u32 v{T0+2}, v{T0+3}, 8, v{T0+2}")
        A(f"v_bfe_u32 v{T0+3}, v{T0+1}, 1, 1")
        A(f"v_lshl_add_u32 v{T0+2}, v{T0+3}, 3, v{T0+2}")
        A(f"v_cvt_pk_bf16_f32 v{P_+2*q}, v{O+4*q}, v{O+4*q+1}")
        A(f"v_cvt_pk_bf16_f32 v{P_+2*q+1}, v{O+4*q+2}, v{O+4*q+3}")
        if q == 2:
            A("s_mov_b32 exec_hi, 0")
        A(f"buffer_store_dwordx2 {v(P_+2*q,2)}, v{T0+2}, s[16:19], s40 offen")
    endpgm(A)

def dma_chunk(A, ldsbase, lo=0, hi=5):
    for i in range(lo, hi):
        A(f"s_add_u32 m0, {ldsbase}, {i*4096}")
        A(f"s_add_u32 s30, s24, {i*4096}")
        A(f"buffer_load_dwordx4 v{vL16}, s[4:7], s30 offen lds")
    if hi == 5:
        A(f"s_add_u32 s24, s24, {CH}")

def kv_reads(A, buf, tile, first=None):
    o = tile * 2560
    A(f"ds_read_b128 {v(KA[buf],4)}, v{vKA} offset:{o}")
    A("s_mov_b64 exec, s[38:39]")
    A(f"ds_read_b64 {v(KB[buf],2)}, v{vKB} offset:{o+1024}")
    A("s_mov_b64 exec, s[36:37]")
    A(f"ds_read_b128 {v(VF[buf],4)}, v{vV} offset:{o+1280}")
    A(f"ds_read_b128 {v(VF[buf]+4,4)}, v{vV} offset:{o+1920}")
    A("s_mov_b64 exec, -1")

def unit(A, t, qt, mid=None):
    cur, nxt = S_[qt], S_[qt ^ 1]
    kb = (t + qt) & 1
    e = lambda i: A(f"v_exp_f32 v{cur+i}, v{cur+i}")
    c = lambda i: A(f"v_cvt_pk_bf16_f32 v{P_+i}, v{cur+2*i}, v{cur+2*i+1}")
    e(0); e(1)
    pv = (t - 1 + qt) & 1
    mf16(A, OA[qt ^ 1], VF[pv] + 4, P_ + 4, OA[qt ^ 1])
    if mid: mid()
    e(2)
    mf16(A, nxt, KA[kb], QA[qt ^ 1], "0")
    for i in range(3, 8): e(i)
    for i in range(4): c(i)
    e(8)
    mf8(A, nxt, KB[kb], QB[qt ^ 1])
    for i in range(9, 13): e(i)
    mf16(A, OA[qt], VF[t & 1], P_, OA[qt])
    e(13); e(14); e(15)
    for i in range(4, 8): c(i)

def gen_att(A, label="att", entry=True):
    L = lambda n: f"L_{label}_{n}"
    if entry:
        kernel_begin(A, "att_kernel")
        A("s_cmp_ge_u32 s2, 256")
        A(f"s_cbranch_scc1 {L('end')}")
        stamp_begin(A)
    A("s_load_dwordx2 s[34:35], s[0:1], 72")
    A("v_lshrrev_b32 v1, 6, v0")
    A(f"v_and_b32 v{vLANE}, 63, v0")
    A("v_readfirstlane_b32 s20, v1")
    A(f"v_lshlrev_b32 v{vL16}, 4, v{vLANE}")
    A(f"v_and_b32 v{vL31}, 31, v{vLANE}")
    A(f"v_lshrrev_b32 v{vH}, 5, v{vLANE}")
    A("s_and_b32 s21, s2, 7")
    A("s_lshl_b32 s21, s21, 2")
    A("s_bfe_u32 s22, s2, 0x20003")
    A("s_add_u32 s21, s21, s22")
    A("s_and_b32 s25, s20, 3")
    A("s_lshr_b32 s26, s20, 2")
    A("s_lshr_b32 s22, s2, 5")
    A("s_lshl_b32 s22, s22, 2")
    A("s_add_u32 s22, s22, s25")
    A("s_lshl_b32 s22, s22, 1")
    A("s_xor_b32 s27, s26, 1")
    A("s_add_u32 s27, s27, s22")
    A("s_add_u32 s22, s22, s26")
    A("s_mul_i32 s23, s21, 163840")
    A("s_mul_i32 s28, s26, 81920")
    A("s_lshl_b32 s29, s25, 10")
    A("s_add_u32 s24, s23, s28")
    A("s_add_u32 s24, s24, s29")
    A(f"s_mul_i32 s28, s26, {2*CH}")
    A("s_add_u32 s29, s29, s28")
    A(f"s_add_u32 s31, s29, {CH}")
    A("s_lshl_b32 s30, s21, 6")
    A("s_add_u32 s32, s30, s22")
    A("s_add_u32 s33, s30, s27")
    A("s_mul_i32 s32, s32, 1280")
    A("s_mul_i32 s33, s33, 1280")
    A(f"v_lshlrev_b32 v{vKB}, 3, v{vL31}")
    A(f"v_lshl_add_u32 v2, v{vH}, 30, v{vKB}")
    A("s_waitcnt lgkmcnt(0)")
    srd(A, 4, 34, 5242880, KV_OFF)
    srd(A, 8, 34, 2621440, Q_OFF)
    for qt in range(2):
        A(f"buffer_load_dwordx4 {v(QA[qt],4)}, v{vL16}, s[8:11], s{32+qt} offen")
        A(f"buffer_load_dwordx2 {v(QB[qt],2)}, v2, s[8:11], s{32+qt} offen offset:1024")
    dma_chunk(A, "s29", 0, 2)
    stamp(A)
    srd(A, 16, 34, AH_SIZE, AH_OFF)
    A(f"v_mul_u32_u24 v{vV}, 320, v{vH}")
    A(f"v_lshl_add_u32 v{vV}, v{vL31}, 4, v{vV}")
    A(f"v_cmp_gt_u32 s[36:37], 20, v{vL31}")
    A(f"v_cmp_eq_u32 vcc, 20, v{vL31}")
    A("v_mov_b32 v3, 0x3f803f80")
    A("s_mov_b32 s38, -1")
    A("s_mov_b32 s39, 0")
    A("v_cndmask_b32 v3, 0, v3, vcc")
    for i in range(16):
        A(f"v_mov_b32 v{VF[0]+i}, v3")
    for b in range(2):
        A(f"v_mov_b32 v{KB[b]}, 0x3f80")
        A(f"v_mov_b32 v{KB[b]+1}, 0")
    for i in range(4):
        A(f"v_mov_b32 v{P_+4+i}, 0")
    A("s_mul_i32 s41, s21, 5")
    A("s_mul_i32 s40, s22, 139264")
    A(f"v_bfe_u32 v{vOUT}, v{vLANE}, 4, 1")
    A(f"v_mul_u32_u24 v{vOUT}, 69632, v{vOUT}")
    A(f"v_and_b32 v2, 15, v{vLANE}")
    A(f"v_lshl_add_u32 v{vOUT}, v2, 4, v{vOUT}")
    dma_chunk(A, "s29", 2, 5)
    A("s_waitcnt vmcnt(3)")
    A("s_barrier")
    stamp(A)
    for t in range(2):
        A(f"ds_read_b128 {v(KA[t],4)}, v{vL16} offset:{t*2560}")
    A("s_mov_b64 exec, s[38:39]")
    for t in range(2):
        A(f"ds_read_b64 {v(KB[t],2)}, v{vKB} offset:{t*2560+1024}")
    A("s_mov_b64 exec, -1")
    A(f"v_add_u32 v{vKA}, s28, v{vL16}")
    A(f"v_add_u32 v{vKB}, s28, v{vKB}")
    A(f"v_add_u32 v{vV}, s28, v{vV}")
    A("s_waitcnt lgkmcnt(0)")
    for qt in range(2):
        for t in range(2):
            mf16(A, 32 * qt + 16 * t, KA[t], QA[qt], "0")
    A("s_nop 6")
    for qt in range(2):
        for t in range(2):
            mf8(A, 32 * qt + 16 * t, KB[t], QB[qt])
    A("s_waitcnt vmcnt(0)")
    A("s_barrier")
    kv_reads(A, 0, 0)
    dma_chunk(A, "s31")
    A("s_nop 1")
    for qt in range(2):
        b = 32 * qt
        A(f"v_max3_f32 v{T0+qt}, v{b}, v{b+1}, v{b+2}")
        for i in range(3, 31, 2):
            A(f"v_max3_f32 v{T0+qt}, v{T0+qt}, v{b+i}, v{b+i+1}")
        A(f"v_max_f32 v{T0+qt}, v{T0+qt}, v{b+31}")
        A(f"v_mov_b32 v{T0+2+qt}, v{T0+qt}")
    A("s_nop 0")
    for qt in range(2):
        A(f"v_permlane32_swap_b32 v{T0+qt}, v{T0+2+qt}")
    for i in range(32):
        A(f"v_mov_b32 v{OA[0]+i}, 0")
    for qt in range(2):
        A(f"v_max_f32 v{T0+qt}, v{T0+qt}, v{T0+2+qt}")
        A(f"v_sub_f32 v{T0+qt}, {hex(fbits(-M_OFFSET))}, v{T0+qt}")
        A(f"v_cvt_pk_bf16_f32 v{T0+qt}, v{T0+qt}, 0")
    A("s_not_b64 exec, s[38:39]")
    for qt in range(2):
        A(f"v_mov_b32 v{QB[qt]}, v{T0+qt}")
    A("s_mov_b64 exec, -1")
    A("s_waitcnt lgkmcnt(0)")
    mf16(A, S_[0], KA[0], QA[0], "0")
    A("s_mov_b32 s42, 0")
    A(f"s_mov_b32 s43, {CH}")
    A("s_nop 7")
    mf8(A, S_[0], KB[0], QB[0])
    A("s_nop 11")
    stamp(A)
    A.raw(".p2align 6")
    A.label(L("loop"))
    for t in range(8):
        def mid():
            if t == 7:
                A("s_waitcnt vmcnt(0)")
                A("s_barrier")
                A(f"v_add_u32 v{vKA}, s43, v{vKA}")
                A(f"v_add_u32 v{vKB}, s43, v{vKB}")
                A(f"v_add_u32 v{vV}, s43, v{vV}")
            kv_reads(A, (t + 1) & 1, (t + 1) & 7)
            if t == 7:
                A("s_cmp_ge_u32 s42, 2")
                A(f"s_cbranch_scc1 {L('nodma')}")
                dma_chunk(A, "s29")
                A("s_mov_b32 s29, s31")
                A.label(L("nodma"))
        unit(A, t, 0, mid)
        A("s_waitcnt lgkmcnt(0)")
        unit(A, t, 1)
    A("s_sub_u32 s43, 0, s43")
    A("s_add_u32 s42, s42, 1")
    A("s_cmp_lt_u32 s42, 4")
    A(f"s_cbranch_scc1 {L('loop')}")
    mf16(A, OA[1], VF[1] + 4, P_ + 4, OA[1])
    stamp(A)
    A("s_mul_i32 s44, s25, 3072")
    A("s_add_u32 s45, s44, s28")
    A(f"s_xor_b32 s46, s28, {2*CH}")
    A("s_add_u32 s46, s46, s44")
    A(f"v_add_u32 v{T0}, s45, v{vL16}")
    A(f"v_add_u32 v{T0+1}, s46, v{vL16}")
    A("s_nop 5")
    for i in range(3):
        A(f"ds_write_b128 v{T0}, {v(OA[1]+4*i,4)} offset:{i*1024}")
    A("s_waitcnt lgkmcnt(0)")
    A("s_barrier")
    for i in range(3):
        A(f"ds_read_b128 {v(4*i,4)}, v{T0+1} offset:{i*1024}")
    A("s_mov_b32 s45, 0x1f8")
    A(f"s_mov_b32 s46, {hex(fbits(2.0**100))}")
    A("s_waitcnt lgkmcnt(0)")
    O = OA[0]
    for i in range(12):
        A(f"v_add_f32 v{O+i}, v{O+i}, v{i}")
    A(f"v_mov_b32 v{T0+1}, v{O+8}")
    A(f"v_mov_b32 v{T0}, v{O+8}")
    A("s_mov_b64 s[48:49], -1")
    for i in range(12):
        A(f"v_cmp_class_f32_e64 vcc, v{O+i}, s45")
        A("s_and_b64 s[48:49], s[48:49], vcc")
    A(f"v_permlane32_swap_b32 v{T0+1}, v{T0}")
    A("s_nop 1")
    A(f"v_cmp_ge_f32 vcc, s46, v{T0}")
    A("s_and_b64 s[48:49], s[48:49], vcc")
    A("s_cmp_eq_u64 s[48:49], -1")
    A(f"s_cbranch_scc0 {L('slow')}")
    A.label(L("fin"))
    att_out(A)
    A.label(L("slow"))
    NEG = 16
    A(f"v_lshlrev_b32 v{vKB}, 3, v{vL31}")
    A(f"v_mul_u32_u24 v{vV}, 320, v{vH}")
    A(f"v_lshl_add_u32 v{vV}, v{vL31}, 4, v{vV}")
    A(f"v_mov_b32 v{T0}, 0xff800000")
    A("s_not_b64 exec, s[38:39]")
    A(f"v_mov_b32 v{QB[0]}, 0")
    A("s_mov_b64 exec, -1")
    A("s_mov_b32 s42, s23")
    A("s_add_u32 s43, s23, 163840")
    A.label(L("slow1"))
    A(f"buffer_load_dwordx4 {v(KA[0],4)}, v{vL16}, s[4:7], s42 offen")
    A(f"buffer_load_dwordx2 {v(KB[0],2)}, v{vKB}, s[4:7], s42 offen offset:1024")
    A("s_waitcnt vmcnt(0)")
    mf16(A, 0, KA[0], QA[0], "0")
    A("s_nop 9")
    mf8(A, 0, KB[0], QB[0])
    A("s_nop 11")
    for i in range(8):
        A(f"v_max3_f32 v{T0}, v{T0}, v{2*i}, v{2*i+1}")
    A("s_add_u32 s42, s42, 2560")
    A("s_cmp_lt_u32 s42, s43")
    A(f"s_cbranch_scc1 {L('slow1')}")
    A(f"v_mov_b32 v{T0+1}, v{T0}")
    A("s_nop 1")
    A(f"v_permlane32_swap_b32 v{T0}, v{T0+1}")
    A("s_nop 1")
    A(f"v_max_f32 v{T0}, v{T0}, v{T0+1}")
    A(f"v_sub_f32 v{T0}, 0, v{T0}")
    for i in range(16):
        A(f"v_mov_b32 v{NEG+i}, v{T0}")
        A(f"v_mov_b32 v{O+i}, 0")
    A("s_mov_b32 s42, s23")
    A.label(L("slow2"))
    A(f"buffer_load_dwordx4 {v(KA[0],4)}, v{vL16}, s[4:7], s42 offen")
    A(f"buffer_load_dwordx2 {v(KB[0],2)}, v{vKB}, s[4:7], s42 offen offset:1024")
    A("s_mov_b64 exec, s[36:37]")
    A(f"buffer_load_dwordx4 {v(VF[0],4)}, v{vV}, s[4:7], s42 offen offset:1280")
    A(f"buffer_load_dwordx4 {v(VF[0]+4,4)}, v{vV}, s[4:7], s42 offen offset:1920")
    A("s_mov_b64 exec, -1")
    A("s_waitcnt vmcnt(0)")
    mf16(A, 0, KA[0], QA[0], NEG)
    A("s_nop 9")
    mf8(A, 0, KB[0], QB[0])
    A("s_nop 11")
    for i in range(16):
        A(f"v_exp_f32 v{i}, v{i}")
    for i in range(8):
        A(f"v_cvt_pk_bf16_f32 v{P_+i}, v{2*i}, v{2*i+1}")
    A("s_nop 1")
    mf16(A, O, VF[0], P_, O)
    mf16(A, O, VF[0] + 4, P_ + 4, O)
    A("s_add_u32 s42, s42, 2560")
    A("s_cmp_lt_u32 s42, s43")
    A(f"s_cbranch_scc1 {L('slow2')}")
    A("s_nop 11")
    A(f"v_mov_b32 v{T0+1}, v{O+8}")
    A(f"v_mov_b32 v{T0}, v{O+8}")
    A("s_nop 1")
    A(f"v_permlane32_swap_b32 v{T0+1}, v{T0}")
    A("s_nop 1")
    A(f"s_branch {L('fin')}")
    if entry:
        A.label(L("end"))
        A("s_endpgm")
```

```python
import math, sys
from asmlib import *

NAME = "parallel_sum__softmax_full_mha__swiglu_ffn__prompt"
XN_OFF = 0
Q_OFF = 0x280000
KV_OFF = 0x500000
AH_OFF = 0xA00000
AH_SIZE = 128 * 68 * 1024
QSCALE = math.log2(math.e) / math.sqrt(20.0)
import struct
def fbits(x): return struct.unpack("<I", struct.pack("<f", x))[0]

import os
DIAG = os.environ.get("DIAG", "0") == "1"
STAMP_OFF = 0x1400000
_st = {"n": 0, "k": -1}
def stamp_begin(A):
    if not DIAG: return
    _st["k"] += 1
    _st["n"] = 1
    A("s_memtime s[64:65]")
    A("s_memrealtime s[88:89]")
    A("s_load_dwordx2 s[92:93], s[0:1], 72")
    A("v_lshrrev_b32 v1, 6, v0")
    A("s_nop 0")
    A("v_readfirstlane_b32 s91, v1")
    A("s_lshl_b32 s90, s2, 4")
    A("s_add_u32 s90, s90, s91")
    A("s_lshl_b32 s90, s90, 6")
    A(f"s_add_u32 s90, s90, {STAMP_OFF + _st['k'] * 1024 * 1024}")
    A("s_waitcnt lgkmcnt(0)")
    stamp(A)
def stamp(A, i=None):
    if not DIAG: return
    if i is None:
        i = _st["n"]; _st["n"] += 1
    A(f"s_memtime s[{64+2*i}:{65+2*i}]")
    A("s_waitcnt lgkmcnt(0)")
def stamp_end(A, tag):
    if not DIAG: return
    n = _st["n"]
    A("s_waitcnt vmcnt(0) lgkmcnt(0)")
    A(f"s_memtime s[{64+2*n}:{65+2*n}]")
    A("s_memrealtime s[86:87]")
    A("s_waitcnt lgkmcnt(0)")
    A("s_mov_b64 exec, -1")
    A("v_mov_b32 v0, 0")
    for i in range(n + 1):
        A(f"v_writelane_b32 v0, s{64+2*i}, {i}")
    A("v_writelane_b32 v0, s88, 12")
    A("v_writelane_b32 v0, s86, 13")
    A(f"s_mov_b32 s86, {n+1}")
    A("v_writelane_b32 v0, s86, 14")
    A("s_mov_b32 s86, 0x5a5a5a5a")
    A("v_writelane_b32 v0, s86, 15")
    A("s_mov_b32 s94, 0x10000000")
    A("s_mov_b32 s95, 0x00020000")
    A("v_mbcnt_lo_u32_b32 v1, -1, 0")
    A("v_lshlrev_b32 v1, 2, v1")
    A("s_mov_b64 exec, 0xffff")
    A("buffer_store_dword v0, v1, s[92:95], s90 offen")
_tag = [0]
def endpgm(A):
    _tag[0] += 1
    stamp_end(A, _tag[0])
    A("s_endpgm")

def wave_sum(A, r, t):
    for m in ("quad_perm:[1,0,3,2]", "quad_perm:[2,3,0,1]", "row_half_mirror", "row_mirror"):
        A("s_nop 1")
        A(f"v_add_f32_dpp v{r}, v{r}, v{r} {m} row_mask:0xf bank_mask:0xf")
    for p in ("v_permlane16_swap_b32", "v_permlane32_swap_b32"):
        A(f"v_mov_b32 v{t}, v{r}")
        A("s_nop 1")
        A(f"{p} v{r}, v{t}")
        A("s_nop 1")
        A(f"v_add_f32 v{r}, v{r}, v{t}")

def gen_ln(A):
    kernel_begin(A, "ln_kernel")
    A("s_cmp_ge_u32 s2, 256")
    A("s_cbranch_scc1 L_ln_end")
    stamp_begin(A)
    A("s_load_dwordx2 s[4:5], s[0:1], 0")
    A("s_load_dwordx2 s[6:7], s[0:1], 72")
    A("v_lshrrev_b32 v1, 6, v0")
    A("v_and_b32 v2, 63, v0")
    A("v_mul_u32_u24 v1, 2560, v1")
    A("v_lshl_add_u32 v1, v2, 2, v1")
    A("s_mul_i32 s3, s2, 10240")
    A("s_waitcnt lgkmcnt(0)")
    srd(A, 8, 4, 2621440)
    srd(A, 12, 6, 2621440, XN_OFF)
    for r in range(2):
        for i in range(5):
            A(f"buffer_load_dword v{10+r*5+i}, v1, s[8:11], s3 offen offset:{r*1280+i*256}")
    A("s_waitcnt vmcnt(0)")
    for r in range(2):
        b = 20 + r * 10
        for i in range(5):
            A(f"v_lshlrev_b32 v{b+2*i}, 16, v{10+r*5+i}")
            A(f"v_and_b32 v{b+2*i+1}, 0xffff0000, v{10+r*5+i}")
        A(f"v_add_f32 v40, v{b}, v{b+1}")
        for i in range(2, 10):
            A(f"v_add_f32 v40, v40, v{b+i}")
        wave_sum(A, 40, 41)
        A(f"v_mul_f32 v40, {hex(fbits(1.0/640))}, v40")
        for i in range(10):
            A(f"v_sub_f32 v{b+i}, v{b+i}, v40")
        A(f"v_mul_f32 v42, v{b}, v{b}")
        for i in range(1, 10):
            A(f"v_fmac_f32 v42, v{b+i}, v{b+i}")
        wave_sum(A, 42, 41)
        A(f"v_mov_b32 v43, {hex(fbits(1e-5))}")
        A(f"v_fmac_f32 v43, {hex(fbits(1.0/640))}, v42")
        A("v_rsq_f32 v43, v43")
        A("s_nop 0")
        for i in range(10):
            A(f"v_mul_f32 v{b+i}, v{b+i}, v43")
        for i in range(5):
            A(f"v_cvt_pk_bf16_f32 v{10+r*5+i}, v{b+2*i}, v{b+2*i+1}")
            A(f"buffer_store_dword v{10+r*5+i}, v1, s[12:15], s3 offen offset:{r*1280+i*256}")
    endpgm(A)
    A.label("L_ln_end")
    A("s_endpgm")

NST = 2
def gemm_stage_dma(A, slot):
    for jj in range(4):
        A(f"s_add_u32 m0, s29, {slot*32768 + jj*4096}")
        if jj:
            A(f"s_add_u32 s30, s24, {jj*40960}")
        else:
            A("s_nop 0")
        A(f"buffer_load_dwordx4 v101, s[4:7], {'s30' if jj else 's24'} offen lds")
    for st in range(2):
        for jj in range(2):
            A(f"s_add_u32 m0, s29, {slot*32768 + 16384 + st*8192 + jj*4096}")
            if jj:
                A(f"s_add_u32 s30, s{25+st}, s27")
            else:
                A("s_nop 0")
            A(f"buffer_load_dwordx4 v102, s[{8+4*st}:{11+4*st}], {'s30' if jj else f's{25+st}'} offen lds")
    A("s_add_u32 s24, s24, 128")
    A("s_add_u32 s25, s25, s28")
    A("s_add_u32 s26, s26, s28")

def gemm_frag_reads(A, slot, ks, buf):
    fb = 64 + 16 * buf
    for tm in range(2):
        A(f"ds_read_b128 {v(fb+4*tm,4)}, v{96+ks} offset:{slot*32768 + tm*4096}")
    for st in range(2):
        for rd in range(2):
            A(f"ds_read_b64_tr_b16 {v(fb+8+4*st+2*rd,2)}, v100 offset:{slot*32768 + 16384 + st*8192 + (16*ks+4*rd)*128}")

def gemm_loop(A, transposed):
    for kt in range(10):
        slot = kt % NST
        inflight = min(NST - 2, 9 - kt) if kt else NST - 2
        A(f"s_waitcnt vmcnt({8*max(0,min(NST-2, 9-kt))})")
        A("s_barrier")
        if kt in (0, 1, 5): stamp(A, {0: 2, 1: 3, 5: 4}[kt])
        gemm_frag_reads(A, slot, 0, 0)
        if kt + NST - 1 < 10:
            gemm_stage_dma(A, (kt + NST - 1) % NST)
        for ks in range(4):
            if ks < 3:
                gemm_frag_reads(A, slot, ks + 1, (ks + 1) & 1)
                A("s_waitcnt lgkmcnt(6)")
            else:
                A("s_waitcnt lgkmcnt(0)")
            fb = 64 + 16 * (ks & 1)
            for tm in range(2):
                for st in range(2):
                    acc = v(16 * (2 * tm + st), 16)
                    xa, wa = v(fb + 4 * tm, 4), v(fb + 8 + 4 * st, 4)
                    c = "0" if (kt == 0 and ks == 0) else acc
                    if transposed:
                        A(f"v_mfma_f32_32x32x16_bf16 {acc}, {wa}, {xa}, {c}")
                    else:
                        A(f"v_mfma_f32_32x32x16_bf16 {acc}, {xa}, {wa}, {c}")
    A("s_nop 15")
    stamp(A, 5)
    _st["n"] = 6

def gen_gemm1(A):
    kernel_begin(A, "gemm1_kernel")
    A("s_cmp_ge_u32 s2, 624")
    A("s_cbranch_scc1 L_g1_end")
    stamp_begin(A)
    A("s_load_dwordx2 s[34:35], s[0:1], 8")
    A("s_load_dwordx4 s[36:39], s[0:1], 32")
    A("s_load_dwordx2 s[40:41], s[0:1], 72")
    A("v_lshrrev_b32 v1, 6, v0")
    A("v_and_b32 v103, 63, v0")
    A("v_readfirstlane_b32 s20, v1")
    A("s_lshl_b32 s29, s20, 10")
    A("s_lshr_b32 s21, s20, 1")
    A("s_and_b32 s22, s20, 1")
    A("s_cmp_ge_u32 s2, 240")
    A("s_cselect_b32 s23, 240, 0")
    A("s_mov_b32 s33, 3840")
    A("s_cmov_b32 s33, 3072")
    A("s_sub_u32 s23, s2, s23")
    A("s_and_b32 s31, s23, 15")
    A("s_lshr_b32 s32, s23, 4")
    A("s_lshl_b32 s27, s33, 5")
    A("s_lshl_b32 s28, s33, 6")
    A("s_mul_i32 s24, s31, 163840")
    A("v_lshrrev_b32 v2, 3, v103")
    A("v_lshl_add_u32 v2, v1, 3, v2")
    A("v_lshrrev_b32 v3, 4, v103")
    A("v_and_b32 v4, 1, v1")
    A("v_lshl_add_u32 v4, v4, 2, v3")
    A("v_and_b32 v5, 7, v103")
    A("v_xor_b32 v4, v4, v5")
    A("v_lshlrev_b32 v4, 4, v4")
    A("v_mul_u32_u24 v101, 1280, v2")
    A("v_add_u32 v101, v101, v4")
    A("v_and_b32 v3, 1, v3")
    A("v_lshlrev_b32 v3, 2, v3")
    A("v_xor_b32 v3, v3, v5")
    A("v_lshlrev_b32 v3, 4, v3")
    A("v_mul_u32_u24 v102, s33, v2")
    A("v_add_u32 v102, v102, v3")
    A("v_and_b32 v104, 31, v103")
    A("v_lshrrev_b32 v105, 5, v103")
    A("s_lshl_b32 s30, s21, 13")
    A("v_lshl_add_u32 v2, v104, 7, s30")
    A("v_bfe_u32 v3, v103, 1, 3")
    A("v_xor_b32 v3, v3, v105")
    for ks in range(4):
        A(f"v_xor_b32 v4, {2*ks}, v3")
        A(f"v_lshl_add_u32 v{96+ks}, v4, 4, v2")
    A("v_bfe_u32 v2, v103, 2, 2")
    A("v_lshl_add_u32 v2, v105, 3, v2")
    A("v_lshlrev_b32 v2, 7, v2")
    A("v_bfe_u32 v3, v103, 4, 1")
    A("v_lshlrev_b32 v3, 5, v3")
    A("v_and_b32 v4, 3, v103")
    A("v_lshl_add_u32 v3, v4, 3, v3")
    A("v_bfe_u32 v4, v103, 3, 1")
    A("v_xor_b32 v4, s22, v4")
    A("v_lshl_add_u32 v3, v4, 6, v3")
    A("v_add_u32 v100, v2, v3")
    A("s_waitcnt lgkmcnt(0)")
    srd(A, 4, 40, 2621440, XN_OFF)
    A("s_cmp_ge_u32 s2, 240")
    A("s_cbranch_scc1 L_g1_gu_setup")
    srd(A, 8, 34, 640 * 3840)
    srd(A, 12, 34, 640 * 3840)
    A("s_lshl_b32 s25, s32, 8")
    A("s_add_u32 s26, s25, 128")
    A("s_branch L_g1_go")
    A.label("L_g1_gu_setup")
    srd(A, 8, 36, 640 * 3072)
    srd(A, 12, 38, 640 * 3072)
    A("s_lshl_b32 s25, s32, 7")
    A("s_mov_b32 s26, s25")
    A.label("L_g1_go")
    for p in range(NST - 1):
        gemm_stage_dma(A, p)
    A("s_lshl_b32 s42, s31, 2")
    A("s_lshl_b32 s43, s21, 1")
    A("s_add_u32 s42, s42, s43")
    A("s_cmp_ge_u32 s2, 240")
    A("s_cbranch_scc1 L_g1_T")
    A("s_cmp_ge_u32 s32, 10")
    A("s_cbranch_scc1 L_g1_V")
    A.label("L_g1_T")
    gemm_loop(A, True)
    A("s_cmp_ge_u32 s2, 240")
    A("s_cbranch_scc1 L_g1_epi_gu")
    A("s_cmp_ge_u32 s32, 5")
    A(f"s_mov_b32 s44, {Q_OFF}")
    A(f"s_cmov_b32 s44, {KV_OFF}")
    A("s_mov_b32 s45, 81920")
    A("s_cmov_b32 s45, 163840")
    A("s_mov_b32 s46, 1280")
    A("s_cmov_b32 s46, 2560")
    A(f"s_cselect_b32 s47, 1.0, {hex(fbits(QSCALE))}")
    A("s_cselect_b32 s48, 160, 0")
    A("s_mov_b32 s18, 2621440")
    A("s_cmov_b32 s18, 5242880")
    A("s_add_u32 s16, s40, s44")
    A("s_addc_u32 s17, s41, 0")
    A("s_mov_b32 s19, 0x00020000")
    A("s_lshl_b32 s49, s32, 5")
    A("s_sub_u32 s49, s49, s48")
    A("s_lshl_b32 s50, s22, 3")
    A("s_add_u32 s49, s49, s50")
    A("s_mul_i32 s50, s42, s46")
    A("s_add_u32 s51, s50, s46")
    A("v_add_u32 v64, s49, v105")
    A("v_lshlrev_b32 v65, 4, v104")
    for st in range(2):
        for q in range(4):
            A(f"v_add_u32 v66, {st*16+2*q}, v64")
            A("v_mul_u32_u24 v67, 205, v66")
            A("v_lshrrev_b32 v67, 10, v67")
            A("v_mul_u32_u24 v68, 5, v67")
            A("v_sub_u32 v66, v66, v68")
            A("v_lshrrev_b32 v68, 2, v66")
            A("v_lshrrev_b32 v68, v68, v65")
            A("v_mad_u32_u24 v68, v67, s45, v68")
            A("v_lshrrev_b32 v67, 1, v66")
            A("v_lshl_add_u32 v68, v67, 9, v68")
            A("v_and_b32 v67, 1, v66")
            A("v_lshl_add_u32 v68, v67, 3, v68")
            for tm in range(2):
                a = 16 * (2 * tm + st) + 4 * q
                d = 70 + 2 * tm
                for i in range(4):
                    A(f"v_mul_f32 v{a+i}, s47, v{a+i}")
                A(f"v_cvt_pk_bf16_f32 v{d}, v{a}, v{a+1}")
                A(f"v_cvt_pk_bf16_f32 v{d+1}, v{a+2}, v{a+3}")
                A(f"buffer_store_dwordx2 {v(d,2)}, v68, s[16:19], s{50+tm} offen")
    endpgm(A)
    A.label("L_g1_epi_gu")
    srd(A, 16, 40, AH_SIZE, AH_OFF)
    A("v_bfe_u32 v64, v103, 4, 1")
    A("v_mul_u32_u24 v64, 69632, v64")
    A("v_lshl_add_u32 v64, v105, 8, v64")
    A("v_and_b32 v65, 15, v103")
    A("v_lshl_add_u32 v64, v65, 4, v64")
    A("s_mul_i32 s50, s42, 139264")
    A("s_lshl_b32 s51, s32, 1")
    A("s_add_u32 s51, s51, s22")
    A("s_add_u32 s51, s51, 20")
    A("s_lshl_b32 s51, s51, 10")
    A("s_add_u32 s50, s50, s51")
    A("s_add_u32 s51, s50, 139264")
    A(f"s_mov_b32 s47, {hex(fbits(-math.log2(math.e)))}")
    for tm in range(2):
        g, u = 32 * tm, 32 * tm + 16
        for half in range(2):
            t = 68
            for i in range(8):
                A(f"v_mul_f32 v{t+i}, s47, v{g+8*half+i}")
            for i in range(8):
                A(f"v_exp_f32 v{t+i}, v{t+i}")
            for i in range(8):
                A(f"v_mul_f32 v{g+8*half+i}, v{g+8*half+i}, v{u+8*half+i}")
            for i in range(8):
                A(f"v_add_f32 v{t+i}, 1.0, v{t+i}")
            for i in range(8):
                A(f"v_rcp_f32 v{t+i}, v{t+i}")
            A("s_nop 0")
            for i in range(8):
                A(f"v_mul_f32 v{t+i}, v{t+i}, v{g+8*half+i}")
            d = 80 + 4 * (2 * tm + half)
            for i in range(4):
                A(f"v_cvt_pk_bf16_f32 v{d+i}, v{t+2*i}, v{t+2*i+1}")
            A(f"buffer_store_dwordx4 {v(d,4)}, v64, s[16:19], s{50+tm} offen offset:{half*512}")
    endpgm(A)
    A.label("L_g1_V")
    gemm_loop(A, False)
    srd(A, 16, 40, 5242880, KV_OFF)
    A("s_lshl_b32 s49, s32, 7")
    A("s_sub_u32 s49, s49, 1280")
    A("s_lshl_b32 s50, s22, 5")
    A("s_add_u32 s49, s49, s50")
    A("s_mul_i32 s50, s42, 2560")
    A("s_add_u32 s51, s50, 2560")
    A("s_mov_b32 s45, 163840")
    A("v_mul_u32_u24 v65, 320, v105")
    for st in range(2):
        A(f"v_add_u32 v66, s49, v104")
        if st:
            A("v_add_u32 v66, 64, v66")
        A("v_mul_u32_u24 v67, 3277, v66")
        A("v_lshrrev_b32 v67, 16, v67")
        A("v_mul_u32_u24 v68, 20, v67")
        A("v_sub_u32 v66, v66, v68")
        A("v_lshl_add_u32 v68, v66, 4, v65")
        A(f"v_mad_u32_u24 v{64 if st else 69}, v67, s45, v68")
        va = 64 if st else 69
        for tm in range(2):
            for mf in range(2):
                a = 16 * (2 * tm + st) + 8 * mf
                d = 72 + 4 * (mf + 2 * tm + 4 * st)
                if d + 3 > 95: d -= 16
                for i in range(4):
                    A(f"v_cvt_pk_bf16_f32 v{d+i}, v{a+2*i}, v{a+2*i+1}")
                A(f"buffer_store_dwordx4 {v(d,4)}, v{va}, s[16:19], s{50+tm} offen offset:{1280+mf*640}")
    endpgm(A)
    A.label("L_g1_end")
    A("s_endpgm")

S_ = [0, 16]; NEGM = 32; OACC = 48; P_ = 64
KA = [72, 76]; KB = [80, 82]; VF = [84, 92]; QA = 100; QB = 104
vKA, vKB, vV = 106, 107, 108
M_OFFSET = 80.0

def att_out(A):
    A("v_rcp_f32 v110, v110")
    A("s_nop 0")
    for i in range(12):
        A(f"v_mul_f32 v{OACC+i}, v{OACC+i}, v110")
    for q in range(3):
        A(f"v_add_u32 v111, s41, v122" if q == 0 else f"v_add_u32 v111, 2, v111")
        A("v_lshrrev_b32 v112, 3, v111")
        A("v_lshl_add_u32 v112, v112, 10, v109")
        A("v_bfe_u32 v113, v111, 2, 1")
        A("v_lshl_add_u32 v112, v113, 9, v112")
        A("v_and_b32 v113, 1, v111")
        A("v_lshl_add_u32 v112, v113, 8, v112")
        A("v_bfe_u32 v113, v111, 1, 1")
        A("v_lshl_add_u32 v112, v113, 3, v112")
        A(f"v_cvt_pk_bf16_f32 v{114+2*q}, v{OACC+4*q}, v{OACC+4*q+1}")
        A(f"v_cvt_pk_bf16_f32 v{115+2*q}, v{OACC+4*q+2}, v{OACC+4*q+3}")
        if q == 2:
            A("s_mov_b32 exec_hi, 0")
        A(f"buffer_store_dwordx2 {v(114+2*q,2)}, v112, s[16:19], s40 offen")
    endpgm(A)

def att_dma(A, slot):
    for i in range(5):
        A(f"s_add_u32 m0, s29, {slot*40960 + i*8192}")
        A(f"s_add_u32 s30, s24, {i*8192}")
        A("buffer_load_dwordx4 v120, s[4:7], s30 offen lds")
    A("s_add_u32 s24, s24, 40960")

def gen_att(A):
    kernel_begin(A, "att_kernel")
    A("s_cmp_ge_u32 s2, 256")
    A("s_cbranch_scc1 L_att_end")
    stamp_begin(A)
    A("s_load_dwordx2 s[34:35], s[0:1], 72")
    A("v_lshrrev_b32 v1, 6, v0")
    A("v_and_b32 v119, 63, v0")
    A("v_readfirstlane_b32 s20, v1")
    A("v_lshlrev_b32 v120, 4, v119")
    A("v_and_b32 v121, 31, v119")
    A("v_lshrrev_b32 v122, 5, v119")
    A("s_and_b32 s21, s2, 7")
    A("s_lshl_b32 s21, s21, 2")
    A("s_bfe_u32 s22, s2, 0x20003")
    A("s_add_u32 s21, s21, s22")
    A("s_lshr_b32 s22, s2, 5")
    A("s_lshl_b32 s22, s22, 3")
    A("s_add_u32 s22, s22, s20")
    A("s_lshl_b32 s29, s20, 10")
    A("s_mul_i32 s23, s21, 163840")
    A("s_add_u32 s24, s23, s29")
    A("s_waitcnt lgkmcnt(0)")
    srd(A, 4, 34, 5242880, KV_OFF)
    srd(A, 8, 34, 2621440, Q_OFF)
    srd(A, 16, 34, AH_SIZE, AH_OFF)
    A("s_lshl_b32 s30, s21, 6")
    A("s_add_u32 s30, s30, s22")
    A("s_mul_i32 s30, s30, 1280")
    A("v_lshlrev_b32 v2, 3, v121")
    A("v_lshl_add_u32 v2, v122, 30, v2")
    A(f"buffer_load_dwordx4 {v(QA,4)}, v120, s[8:11], s30 offen")
    A(f"buffer_load_dwordx2 {v(QB,2)}, v2, s[8:11], s30 offen offset:1024")
    att_dma(A, 0)
    att_dma(A, 1)
    A(f"v_mov_b32 v{vKA}, v120")
    A(f"v_lshlrev_b32 v{vKB}, 3, v121")
    A(f"v_mul_u32_u24 v{vV}, 320, v122")
    A(f"v_lshl_add_u32 v{vV}, v121, 4, v{vV}")
    A("v_cmp_gt_u32 s[36:37], 20, v121")
    A("v_cmp_eq_u32 vcc, 20, v121")
    A("v_mov_b32 v3, 0x3f803f80")
    A("s_nop 0")
    A("v_cndmask_b32 v3, 0, v3, vcc")
    for i in range(16):
        A(f"v_mov_b32 v{VF[0]+i}, v3")
    for i in range(16):
        A(f"v_mov_b32 v{OACC+i}, 0")
    A("s_mul_i32 s41, s21, 5")
    A("s_mul_i32 s40, s22, 139264")
    A("v_bfe_u32 v109, v119, 4, 1")
    A("v_mul_u32_u24 v109, 69632, v109")
    A("v_and_b32 v2, 15, v119")
    A("v_lshl_add_u32 v109, v2, 4, v109")
    A("s_waitcnt vmcnt(5)")
    A("s_barrier")
    stamp(A)
    for t in range(4):
        A(f"ds_read_b128 {v(KA[t&1],4)}, v{vKA} offset:{t*2560}")
        A(f"ds_read_b64 {v(KB[t&1],2)}, v{vKB} offset:{t*2560+1024}")
        A("s_waitcnt lgkmcnt(0)")
        sb = S_[t & 1]
        A(f"v_mfma_f32_32x32x16_bf16 {v(sb,16)}, {v(KA[t&1],4)}, {v(QA,4)}, 0")
        A("s_nop 9")
        A(f"v_mfma_f32_32x32x8bf16_1k {v(sb,16)}, {v(KB[t&1],2)}, {v(QB,2)}, {v(sb,16)}")
        A("s_nop 11")
        for i in range(8):
            if t == 0 and i == 0:
                A(f"v_max_f32 v110, v{sb}, v{sb+1}")
            else:
                A(f"v_max3_f32 v110, v110, v{sb+2*i}, v{sb+2*i+1}")
    A("v_mov_b32 v111, v110")
    A("s_nop 1")
    A("v_permlane32_swap_b32 v110, v111")
    A("s_nop 1")
    A("v_max_f32 v110, v110, v111")
    A(f"v_sub_f32 v110, {hex(fbits(-M_OFFSET))}, v110")
    for i in range(16):
        A(f"v_mov_b32 v{NEGM+i}, v110")
    A(f"ds_read_b128 {v(KA[0],4)}, v{vKA}")
    A(f"ds_read_b64 {v(KB[0],2)}, v{vKB} offset:1024")
    A(f"ds_read_b128 {v(KA[1],4)}, v{vKA} offset:2560")
    A(f"ds_read_b64 {v(KB[1],2)}, v{vKB} offset:{2560+1024}")
    A("s_mov_b64 exec, s[36:37]")
    A(f"ds_read_b128 {v(VF[0],4)}, v{vV} offset:1280")
    A(f"ds_read_b128 {v(VF[0]+4,4)}, v{vV} offset:1920")
    A("s_mov_b64 exec, -1")
    A("s_waitcnt lgkmcnt(4)")
    A(f"v_mfma_f32_32x32x16_bf16 {v(S_[0],16)}, {v(KA[0],4)}, {v(QA,4)}, {v(NEGM,16)}")
    A("s_nop 9")
    A(f"v_mfma_f32_32x32x8bf16_1k {v(S_[0],16)}, {v(KB[0],2)}, {v(QB,2)}, {v(S_[0],16)}")
    for i in range(4):
        A(f"v_mov_b32 v{P_+4+i}, 0")
    A("s_nop 7")
    A("s_mov_b32 s42, 0")
    A("s_mov_b32 s43, 40960")
    stamp(A)
    A.raw(".p2align 6")
    A.label("L_att_loop")
    for t in range(16):
        cur, nxt = S_[t & 1], S_[(t + 1) & 1]
        A("s_waitcnt lgkmcnt(0)")
        if t == 14:
            A("s_waitcnt vmcnt(0)")
            A("s_barrier")
            A(f"v_add_u32 v{vKA}, s43, v{vKA}")
            A(f"v_add_u32 v{vKB}, s43, v{vKB}")
        if t == 15:
            A(f"v_add_u32 v{vV}, s43, v{vV}")
            A("s_barrier")
            A("s_cmp_ge_u32 s42, 2")
            A(f"s_cbranch_scc1 L_att_nodma")
            A("s_mul_i32 s44, s42, 40960")
            A("s_add_u32 s44, s44, s29")
            for i in range(5):
                A(f"s_add_u32 m0, s44, {i*8192}")
                A(f"s_add_u32 s30, s24, {i*8192}")
                A("buffer_load_dwordx4 v120, s[4:7], s30 offen lds")
            A("s_add_u32 s24, s24, 40960")
            A.label("L_att_nodma")
        tk = (t + 2) & 15
        tv = (t + 1) & 15
        A(f"ds_read_b128 {v(KA[t&1],4)}, v{vKA} offset:{tk*2560}")
        A(f"v_mfma_f32_32x32x16_bf16 {v(OACC,16)}, {v(VF[(t+1)&1]+4,4)}, {v(P_+4,4)}, {v(OACC,16)}")
        A(f"ds_read_b64 {v(KB[t&1],2)}, v{vKB} offset:{tk*2560+1024}")
        A("s_mov_b64 exec, s[36:37]")
        A(f"ds_read_b128 {v(VF[(t+1)&1],4)}, v{vV} offset:{tv*2560+1280}")
        A(f"ds_read_b128 {v(VF[(t+1)&1]+4,4)}, v{vV} offset:{tv*2560+1920}")
        A("s_mov_b64 exec, -1")
        A(f"v_mfma_f32_32x32x16_bf16 {v(nxt,16)}, {v(KA[(t+1)&1],4)}, {v(QA,4)}, {v(NEGM,16)}")
        for i in range(8):
            A(f"v_exp_f32 v{cur+i}, v{cur+i}")
        for i in range(4):
            A(f"v_cvt_pk_bf16_f32 v{P_+i}, v{cur+2*i}, v{cur+2*i+1}")
        A(f"v_mfma_f32_32x32x8bf16_1k {v(nxt,16)}, {v(KB[(t+1)&1],2)}, {v(QB,2)}, {v(nxt,16)}")
        for i in range(8, 12):
            A(f"v_exp_f32 v{cur+i}, v{cur+i}")
        A(f"v_mfma_f32_32x32x16_bf16 {v(OACC,16)}, {v(VF[t&1],4)}, {v(P_,4)}, {v(OACC,16)}")
        for i in range(12, 16):
            A(f"v_exp_f32 v{cur+i}, v{cur+i}")
        for i in range(4, 8):
            A(f"v_cvt_pk_bf16_f32 v{P_+i}, v{cur+2*i}, v{cur+2*i+1}")
    A("s_sub_u32 s43, 0, s43")
    A("s_add_u32 s42, s42, 1")
    A("s_cmp_lt_u32 s42, 4")
    A("s_cbranch_scc1 L_att_loop")
    A(f"v_mfma_f32_32x32x16_bf16 {v(OACC,16)}, {v(VF[1]+4,4)}, {v(P_+4,4)}, {v(OACC,16)}")
    A("s_waitcnt lgkmcnt(0)")
    A("s_nop 11")
    stamp(A)
    A(f"v_mov_b32 v111, v{OACC+8}")
    A(f"v_mov_b32 v110, v{OACC+8}")
    A("s_nop 1")
    A("v_permlane32_swap_b32 v111, v110")
    A("s_mov_b32 s45, 0x1f8")
    A(f"s_mov_b32 s46, {hex(fbits(2.0**100))}")
    A("v_cmp_ge_f32 s[38:39], s46, v110")
    for i in range(12):
        A(f"v_cmp_class_f32_e64 vcc, v{OACC+i}, s45")
        A("s_and_b64 s[38:39], s[38:39], vcc")
    A("s_cmp_eq_u64 s[38:39], -1")
    A("s_cbranch_scc0 L_att_slow")
    A.label("L_att_fin")
    att_out(A)
    A.label("L_att_slow")
    A("v_lshlrev_b32 v106, 3, v121")
    A("v_mul_u32_u24 v108, 320, v122")
    A("v_lshl_add_u32 v108, v121, 4, v108")
    A("v_mov_b32 v110, 0xff800000")
    A("s_mov_b32 s42, s23")
    A("s_add_u32 s43, s23, 163840")
    A.label("L_att_slow1")
    A(f"buffer_load_dwordx4 {v(KA[0],4)}, v120, s[4:7], s42 offen")
    A(f"buffer_load_dwordx2 {v(KB[0],2)}, v106, s[4:7], s42 offen offset:1024")
    A("s_waitcnt vmcnt(0)")
    A(f"v_mfma_f32_32x32x16_bf16 {v(0,16)}, {v(KA[0],4)}, {v(QA,4)}, 0")
    A("s_nop 9")
    A(f"v_mfma_f32_32x32x8bf16_1k {v(0,16)}, {v(KB[0],2)}, {v(QB,2)}, {v(0,16)}")
    A("s_nop 11")
    for i in range(8):
        A(f"v_max3_f32 v110, v110, v{2*i}, v{2*i+1}")
    A("s_add_u32 s42, s42, 2560")
    A("s_cmp_lt_u32 s42, s43")
    A("s_cbranch_scc1 L_att_slow1")
    A("v_mov_b32 v111, v110")
    A("s_nop 1")
    A("v_permlane32_swap_b32 v110, v111")
    A("s_nop 1")
    A("v_max_f32 v110, v110, v111")
    A("v_sub_f32 v110, 0, v110")
    for i in range(16):
        A(f"v_mov_b32 v{NEGM+i}, v110")
        A(f"v_mov_b32 v{OACC+i}, 0")
    A("s_mov_b32 s42, s23")
    A.label("L_att_slow2")
    A(f"buffer_load_dwordx4 {v(KA[0],4)}, v120, s[4:7], s42 offen")
    A(f"buffer_load_dwordx2 {v(KB[0],2)}, v106, s[4:7], s42 offen offset:1024")
    A("s_mov_b64 exec, s[36:37]")
    A(f"buffer_load_dwordx4 {v(VF[0],4)}, v108, s[4:7], s42 offen offset:1280")
    A(f"buffer_load_dwordx4 {v(VF[0]+4,4)}, v108, s[4:7], s42 offen offset:1920")
    A("s_mov_b64 exec, -1")
    A("s_waitcnt vmcnt(0)")
    A(f"v_mfma_f32_32x32x16_bf16 {v(0,16)}, {v(KA[0],4)}, {v(QA,4)}, {v(NEGM,16)}")
    A("s_nop 9")
    A(f"v_mfma_f32_32x32x8bf16_1k {v(0,16)}, {v(KB[0],2)}, {v(QB,2)}, {v(0,16)}")
    A("s_nop 11")
    for i in range(16):
        A(f"v_exp_f32 v{i}, v{i}")
    for i in range(8):
        A(f"v_cvt_pk_bf16_f32 v{P_+i}, v{2*i}, v{2*i+1}")
    A("s_nop 1")
    A(f"v_mfma_f32_32x32x16_bf16 {v(OACC,16)}, {v(VF[0],4)}, {v(P_,4)}, {v(OACC,16)}")
    A(f"v_mfma_f32_32x32x16_bf16 {v(OACC,16)}, {v(VF[0]+4,4)}, {v(P_+4,4)}, {v(OACC,16)}")
    A("s_add_u32 s42, s42, 2560")
    A("s_cmp_lt_u32 s42, s43")
    A("s_cbranch_scc1 L_att_slow2")
    A("s_nop 11")
    A(f"v_mov_b32 v111, v{OACC+8}")
    A(f"v_mov_b32 v110, v{OACC+8}")
    A("s_nop 1")
    A("v_permlane32_swap_b32 v111, v110")
    A("s_nop 1")
    A("s_branch L_att_fin")
    A.label("L_att_end")
    A("s_endpgm")

FD = 6
def fin_issue(A, step):
    slot = step % FD
    srdw = "s[8:11]" if step < 5 else "s[12:15]"
    sw = "s24" if step < 5 else "s25"
    for j in range(5):
        A(f"s_add_u32 m0, s29, {slot*5120 + j*1024}")
        A("s_nop 0")
        A(f"buffer_load_dwordx4 v{216+j}, {srdw}, {sw} offen lds")
    A(f"s_add_u32 {sw}, {sw}, 40960")
    if step == 5:
        for u in range(4):
            A(f"s_add_u32 s{30+u}, s{30+u}, s34")
    for u in range(4):
        A(f"buffer_load_dwordx4 {v(80+16*slot+4*u,4)}, v221, s[4:7], s{30+u} offen")
        A(f"s_add_u32 s{30+u}, s{30+u}, 1024")

def fin_trreads(A, step):
    slot = step % FD
    b = 176 + 20 * (step & 1)
    for nt in range(5):
        for rd in range(2):
            A(f"ds_read_b64_tr_b16 {v(b+4*nt+2*rd,2)}, v222 offset:{slot*5120 + rd*1280 + nt*32}")

def gen_fin(A):
    kernel_begin(A, "fin_kernel")
    A("s_cmp_ge_u32 s2, 256")
    A("s_cbranch_scc1 L_fin_end")
    stamp_begin(A)
    A("s_load_dwordx2 s[36:37], s[0:1], 0")
    A("s_load_dwordx2 s[38:39], s[0:1], 16")
    A("s_load_dwordx4 s[40:43], s[0:1], 48")
    A("s_load_dwordx2 s[44:45], s[0:1], 72")
    A("v_lshrrev_b32 v1, 6, v0")
    A("v_and_b32 v223, 63, v0")
    A("v_readfirstlane_b32 s20, v1")
    A("s_and_b32 s21, s2, 7")
    A("s_lshl_b32 s21, s21, 2")
    A("s_bfe_u32 s22, s2, 0x20003")
    A("s_add_u32 s21, s21, s22")
    A("s_lshr_b32 s22, s2, 5")
    A("s_mul_i32 s29, s20, 30720")
    A("s_mul_i32 s23, s22, 160")
    A("s_mul_i32 s24, s20, 204800")
    A("s_add_u32 s24, s24, s23")
    A("s_mul_i32 s25, s20, 491520")
    A("s_add_u32 s25, s25, s23")
    for u in range(4):
        A(f"s_add_u32 s{30+u}, s20, {u}")
        A(f"s_and_b32 s{30+u}, s{30+u}, 3")
        A(f"s_lshl_b32 s35, s21, 2")
        A(f"s_add_u32 s{30+u}, s{30+u}, s35")
        A(f"s_mul_i32 s{30+u}, s{30+u}, 68")
        A(f"s_mul_i32 s35, s20, 5")
        A(f"s_add_u32 s{30+u}, s{30+u}, s35")
        A(f"s_lshl_b32 s{30+u}, s{30+u}, 10")
    A("s_mul_i32 s34, s20, 7")
    A("s_add_u32 s34, s34, 15")
    A("s_lshl_b32 s34, s34, 10")
    for j in range(5):
        A(f"v_add_u32 v2, {64*j}, v223")
        A("v_mul_u32_u24 v3, 6554, v2")
        A("v_lshrrev_b32 v3, 16, v3")
        A("v_mul_u32_u24 v4, 10, v3")
        A("v_sub_u32 v2, v2, v4")
        A("v_mul_u32_u24 v3, 1280, v3")
        A(f"v_lshl_add_u32 v{216+j}, v2, 4, v3")
    A("v_lshlrev_b32 v221, 4, v223")
    A("v_lshrrev_b32 v2, 5, v223")
    A("v_lshlrev_b32 v2, 4, v2")
    A("v_bfe_u32 v3, v223, 4, 1")
    A("v_lshl_add_u32 v2, v3, 2, v2")
    A("v_bfe_u32 v3, v223, 2, 2")
    A("v_add_u32 v2, v2, v3")
    A("v_mul_u32_u24 v2, 160, v2")
    A("v_and_b32 v3, 3, v223")
    A("v_lshl_add_u32 v2, v3, 3, v2")
    A("v_add_u32 v222, s29, v2")
    A("v_and_b32 v2, 15, v223")
    A("v_mul_u32_u24 v2, 1280, v2")
    A("v_lshrrev_b32 v3, 4, v223")
    A("v_lshl_add_u32 v224, v3, 3, v2")
    A("s_lshl_b32 s46, s21, 2")
    A("s_add_u32 s46, s46, s20")
    A("s_mul_i32 s46, s46, 20480")
    A("s_add_u32 s46, s46, s23")
    A("s_waitcnt lgkmcnt(0)")
    srd(A, 4, 44, AH_SIZE, AH_OFF)
    srd(A, 8, 38, 640 * 1280)
    srd(A, 12, 40, 1536 * 1280)
    srd(A, 16, 42, 2621440)
    srd(A, 48, 36, 2621440)
    for nt in range(5):
        A(f"buffer_load_dwordx2 {v(226+2*nt,2)}, v224, s[48:51], s46 offen offset:{nt*32}")
    for st in range(FD):
        fin_issue(A, st)
    NS = 17
    A(f"s_waitcnt vmcnt({9*(FD-1)})")
    stamp(A)
    fin_trreads(A, 0)
    for st in range(NS):
        if st in (4, 10): stamp(A)
        if st + 1 < NS:
            issued = min(NS, st + FD)
            A(f"s_waitcnt vmcnt({9*(issued - (st+2))})")
            fin_trreads(A, st + 1)
            A("s_waitcnt lgkmcnt(10)")
        else:
            A("s_waitcnt lgkmcnt(0)")
        b = 176 + 20 * (st & 1)
        ab = 80 + 16 * (st % FD)
        for nt in range(5):
            for u in range(4):
                acc = v(4 * (nt * 4 + u), 4)
                A(f"v_mfma_f32_16x16x32_bf16 {acc}, {v(b+4*nt,4)}, {v(ab+4*u,4)}, {'0' if st == 0 else acc}")
        if st + FD < NS:
            fin_issue(A, st + FD)
    stamp(A)
    A("s_barrier")
    for u in range(1, 4):
        A(f"s_add_u32 s30, s20, {u}")
        A("s_and_b32 s30, s30, 3")
        A("s_mul_i32 s30, s30, 15360")
        A(f"v_add_u32 v80, s30, v221")
        for nt in range(5):
            A(f"ds_write_b128 v80, {v(4*(nt*4+u),4)} offset:{(u-1)*5120 + nt*1024}")
    A("s_mul_i32 s30, s20, 15360")
    A("v_add_u32 v80, s30, v221")
    A("s_waitcnt lgkmcnt(0)")
    A("s_barrier")
    for u in range(3):
        for nt in range(5):
            A(f"ds_read_b128 {v(84+20*u+4*nt,4)}, v80 offset:{u*5120 + nt*1024}")
    for nt in range(5):
        a = 16 * nt
        A(f"v_lshlrev_b32 v150, 16, v{226+2*nt}")
        A(f"v_and_b32 v151, 0xffff0000, v{226+2*nt}")
        A(f"v_lshlrev_b32 v152, 16, v{227+2*nt}")
        A(f"v_and_b32 v153, 0xffff0000, v{227+2*nt}")
        for i in range(4):
            A(f"v_add_f32 v{a+i}, v{a+i}, v{150+i}")
    A("s_waitcnt lgkmcnt(0)")
    for nt in range(5):
        a = 16 * nt
        for u in range(3):
            for i in range(4):
                A(f"v_add_f32 v{a+i}, v{a+i}, v{84+20*u+4*nt+i}")
        A(f"v_cvt_pk_bf16_f32 v{154+2*nt}, v{a}, v{a+1}")
        A(f"v_cvt_pk_bf16_f32 v{155+2*nt}, v{a+2}, v{a+3}")
        A(f"buffer_store_dwordx2 {v(154+2*nt,2)}, v224, s[16:19], s46 offen offset:{nt*32}")
    endpgm(A)
    A.label("L_fin_end")
    A("s_endpgm")

def main(path):
    A = Asm()
    hdr = f"""; LN -> [QKV | gate,up] GEMM -> attention -> output GEMM  (generated by gen/gen1.py, hand-designed)
; @launch kernel=ln_kernel grid=(256,1,1) block=(256,1,1) lds=0
; @launch kernel=gemm1_kernel grid=(624,1,1) block=(256,1,1) lds={NST*32768}
; @launch kernel=att_kernel grid=(256,1,1) block=(512,1,1) lds=81920
; @launch kernel=fin_kernel grid=(256,1,1) block=(256,1,1) lds={4*FD*5120}
.amdgcn_target "amdgcn-amd-amdhsa--gfx950"
.text
"""
    gen_ln(A)
    gen_gemm1(A)
    gen_att(A)
    gen_fin(A)
    out = hdr + A.text() + '.section .rodata,"a"\n'
    out += kernel_desc("ln_kernel", 48) + kernel_desc("gemm1_kernel", 108) + kernel_desc("att_kernel", 124) + kernel_desc("fin_kernel", 240)
    open(path, "w").write(out)

if __name__ == "__main__":
    main(sys.argv[1] if len(sys.argv) > 1 else f"cdna_kernels/{NAME}.s")
```

```python
import math
from asmlib import *
from gen1 import fbits, stamp, stamp_begin, endpgm, XN_OFF, AH_OFF, AH_SIZE, _st, DIAG
import att2
WF_OFF = 0x1800000
WF_SIZE = 8 * 68 * 5 * 1024

def gu_dma(A, slot):
    b = slot * 24576
    A(f"s_add_u32 m0, s29, {b}")
    A("s_nop 0")
    A("buffer_load_dwordx4 v100, s[4:7], s24 offen lds")
    A(f"s_add_u32 m0, s29, {b+8192}")
    A("s_add_u32 s24, s24, 2048")
    A("buffer_load_dwordx4 v101, s[8:11], s25 offen lds")
    A(f"s_add_u32 m0, s29, {b+16384}")
    A("s_nop 0")
    A("buffer_load_dwordx4 v101, s[12:15], s25 offen lds")
    A(f"s_add_u32 s25, s25, {32*3072}")

def gen_gu(A):
    A("s_load_dwordx4 s[36:39], s[0:1], 32")
    A("s_load_dwordx2 s[40:41], s[0:1], 72")
    A("v_lshrrev_b32 v1, 6, v0")
    A("v_and_b32 v103, 63, v0")
    A("v_readfirstlane_b32 s20, v1")
    A("s_sub_u32 s23, s2, 256")
    A("s_and_b32 s31, s23, 3")
    A("s_lshl_b32 s31, s31, 2")
    A("s_bfe_u32 s30, s23, 0x20003")
    A("s_add_u32 s31, s31, s30")
    A("s_bfe_u32 s32, s23, 0x10002")
    A("s_mul_i32 s32, s32, 6")
    A("s_lshr_b32 s30, s23, 5")
    A("s_add_u32 s32, s32, s30")
    A("s_lshl_b32 s29, s20, 10")
    A("s_lshr_b32 s21, s20, 2")
    A("s_and_b32 s22, s20, 3")
    A("s_lshl_b32 s24, s31, 2")
    A("s_lshr_b32 s30, s20, 1")
    A("s_add_u32 s24, s24, s30")
    A("s_mul_i32 s24, s24, 40960")
    A("s_and_b32 s30, s20, 1")
    A("s_lshl_b32 s30, s30, 10")
    A("s_add_u32 s24, s24, s30")
    A("s_lshl_b32 s25, s32, 8")
    A("v_lshlrev_b32 v100, 4, v103")
    A("v_lshrrev_b32 v2, 4, v103")
    A("v_lshl_add_u32 v3, v1, 2, v2")
    A("v_mul_u32_u24 v3, 3072, v3")
    A("v_lshlrev_b32 v2, 2, v2")
    A("v_and_b32 v4, 15, v103")
    A("v_xor_b32 v2, v2, v4")
    A("v_lshl_add_u32 v101, v2, 4, v3")
    A("s_waitcnt lgkmcnt(0)")
    srd(A, 4, 40, 2621440, XN_OFF)
    srd(A, 8, 36, 640 * 3072)
    srd(A, 12, 38, 640 * 3072)
    gu_dma(A, 0)
    gu_dma(A, 1)
    srd(A, 16, 40, AH_SIZE, AH_OFF)
    A("v_lshrrev_b32 v105, 5, v103")
    A("s_lshl_b32 s30, s21, 12")
    A("v_add_u32 v96, s30, v100")
    A("v_bfe_u32 v2, v103, 2, 2")
    A("v_lshl_add_u32 v3, v105, 3, v2")
    A("v_lshlrev_b32 v3, 8, v3")
    A("v_xor_b32 v2, s22, v2")
    A("v_lshl_add_u32 v3, v2, 6, v3")
    A("v_bfe_u32 v2, v103, 4, 1")
    A("v_lshl_add_u32 v3, v2, 5, v3")
    A("v_and_b32 v2, 3, v103")
    A("v_lshl_add_u32 v97, v2, 3, v3")
    A("v_add_u32 v98, 49152, v96")
    A("v_add_u32 v99, 49152, v97")
    for s_ in range(20):
        slot = s_ % 3
        A(f"s_waitcnt vmcnt({3 if s_ < 19 else 0})")
        A("s_barrier")
        if s_ in (0, 10): stamp(A)
        xa, wa, so = (96, 97, slot * 24576) if slot < 2 else (98, 99, 0)
        for ks in range(2):
            fb = 64 + 16 * ks
            for tm in range(2):
                A(f"ds_read_b128 {v(fb+4*tm,4)}, v{xa} offset:{so + tm*2048 + ks*1024}")
            for st in range(2):
                for rd in range(2):
                    A(f"ds_read_b64_tr_b16 {v(fb+8+4*st+2*rd,2)}, v{wa} offset:{so + 8192 + st*8192 + (16*ks+4*rd)*256}")
        if s_ + 2 < 20:
            gu_dma(A, (s_ + 2) % 3)
        for ks in range(2):
            A(f"s_waitcnt lgkmcnt({6 if ks == 0 else 0})")
            fb = 64 + 16 * ks
            for tm in range(2):
                for st in range(2):
                    acc = v(16 * (2 * tm + st), 16)
                    c = "0" if (s_ == 0 and ks == 0) else acc
                    A(f"v_mfma_f32_32x32x16_bf16 {acc}, {v(fb+8+4*st,4)}, {v(fb+4*tm,4)}, {c}")
    stamp(A)
    A("v_bfe_u32 v64, v103, 4, 1")
    A("v_mul_u32_u24 v64, 69632, v64")
    A("v_lshl_add_u32 v64, v105, 8, v64")
    A("v_and_b32 v65, 15, v103")
    A("v_lshl_add_u32 v64, v65, 4, v64")
    A("s_lshl_b32 s42, s31, 2")
    A("s_lshl_b32 s43, s21, 1")
    A("s_add_u32 s42, s42, s43")
    A("s_mul_i32 s50, s42, 139264")
    A("s_lshl_b32 s51, s32, 2")
    A("s_add_u32 s51, s51, s22")
    A("s_add_u32 s51, s51, 20")
    A("s_lshl_b32 s51, s51, 10")
    A("s_add_u32 s50, s50, s51")
    A("s_add_u32 s51, s50, 139264")
    A(f"s_mov_b32 s47, {hex(fbits(-math.log2(math.e)))}")
    for tm in range(2):
        g, u = 32 * tm, 32 * tm + 16
        for half in range(2):
            t = 68
            for i in range(8):
                A(f"v_mul_f32 v{t+i}, s47, v{g+8*half+i}")
            for i in range(8):
                A(f"v_exp_f32 v{t+i}, v{t+i}")
            for i in range(8):
                A(f"v_mul_f32 v{g+8*half+i}, v{g+8*half+i}, v{u+8*half+i}")
            for i in range(8):
                A(f"v_add_f32 v{t+i}, 1.0, v{t+i}")
            for i in range(8):
                A(f"v_rcp_f32 v{t+i}, v{t+i}")
            A("s_nop 0")
            for i in range(8):
                A(f"v_mul_f32 v{t+i}, v{t+i}, v{g+8*half+i}")
            d = 80 + 4 * (2 * tm + half)
            for i in range(4):
                A(f"v_cvt_pk_bf16_f32 v{d+i}, v{t+2*i}, v{t+2*i+1}")
            A(f"buffer_store_dwordx4 {v(d,4)}, v64, s[16:19], s{50+tm} offen offset:{half*512}")
    endpgm(A)

def gen_relayout(A):
    A("s_load_dwordx2 s[36:37], s[0:1], 16")
    A("s_load_dwordx2 s[38:39], s[0:1], 48")
    A("s_load_dwordx2 s[40:41], s[0:1], 72")
    A("v_lshrrev_b32 v1, 6, v0")
    A("v_and_b32 v20, 63, v0")
    A("v_readfirstlane_b32 s20, v1")
    A("s_sub_u32 s23, s2, 448")
    A("s_mul_i32 s29, s20, 5120")
    for j in range(5):
        A(f"v_add_u32 v2, {64*j}, v20")
        A("v_mul_u32_u24 v3, 6554, v2")
        A("v_lshrrev_b32 v3, 16, v3")
        A("v_mul_u32_u24 v4, 10, v3")
        A("v_sub_u32 v2, v2, v4")
        A("v_mul_u32_u24 v3, 1280, v3")
        A(f"v_lshl_add_u32 v{10+j}, v2, 4, v3")
    A("v_lshlrev_b32 v15, 4, v20")
    A("v_lshrrev_b32 v2, 5, v20")
    A("v_lshlrev_b32 v2, 4, v2")
    A("v_bfe_u32 v3, v20, 4, 1")
    A("v_lshl_add_u32 v2, v3, 2, v2")
    A("v_bfe_u32 v3, v20, 2, 2")
    A("v_add_u32 v2, v2, v3")
    A("v_mul_u32_u24 v2, 160, v2")
    A("v_and_b32 v3, 3, v20")
    A("v_lshl_add_u32 v2, v3, 3, v2")
    A("v_add_u32 v16, s29, v2")
    A("s_waitcnt lgkmcnt(0)")
    srd(A, 16, 40, WF_SIZE, WF_OFF)
    A.label("L_rl_loop")
    A("s_cmp_ge_u32 s23, 20")
    A("s_cselect_b32 s8, s38, s36")
    A("s_cselect_b32 s9, s39, s37")
    A(f"s_mov_b32 s10, {640*1280}")
    A(f"s_cmov_b32 s10, {1536*1280}")
    A("s_mov_b32 s11, 0x00020000")
    A("s_cselect_b32 s24, 20, 0")
    A("s_sub_u32 s24, s23, s24")
    A("s_mul_i32 s24, s24, 40960")
    A("s_mul_i32 s25, s20, 160")
    A("s_add_u32 s24, s24, s25")
    for j in range(5):
        A(f"s_add_u32 m0, s29, {j*1024}")
        A("s_nop 0")
        A(f"buffer_load_dwordx4 v{10+j}, s[8:11], s24 offen lds")
    A("s_mul_i32 s25, s20, 68")
    A("s_add_u32 s25, s25, s23")
    A("s_mul_i32 s25, s25, 5120")
    A("s_add_u32 s26, s25, 4096")
    A("s_waitcnt vmcnt(0)")
    for nt in range(5):
        for rd in range(2):
            A(f"ds_read_b64_tr_b16 {v(24+4*nt+2*rd,2)}, v16 offset:{rd*1280 + nt*32}")
    A("s_waitcnt lgkmcnt(0)")
    for nt in range(5):
        A(f"buffer_store_dwordx4 {v(24+4*nt,4)}, v15, s[16:19], {'s25' if nt < 4 else 's26'} offen offset:{(nt&3)*1024}")
    A("s_add_u32 s23, s23, 64")
    A("s_cmp_lt_u32 s23, 68")
    A("s_cbranch_scc1 L_rl_loop")
    A("s_endpgm")

def gen_k2(A):
    kernel_begin(A, "mid_kernel")
    A("s_cmp_ge_u32 s2, 512")
    A("s_cbranch_scc1 L_mid_end")
    stamp_begin(A)
    n0 = _st["n"]
    A("s_cmp_ge_u32 s2, 256")
    A("s_cbranch_scc1 L_mid_b")
    att2.gen_att(A, entry=False)
    A.label("L_mid_b")
    A("s_cmp_ge_u32 s2, 448")
    A("s_cbranch_scc1 L_mid_rl")
    _st["n"] = n0
    gen_gu(A)
    A.label("L_mid_rl")
    gen_relayout(A)
    A.label("L_mid_end")
    A("s_endpgm")

FD = 6
def fin_issue(A, step):
    b = 36 * (step % FD)
    if step == 5:
        for u in range(4):
            A(f"s_add_u32 s{30+u}, s{30+u}, s34")
        A("s_add_u32 s24, s24, s35")
    A("s_add_u32 s25, s24, 4096")
    for nt in range(5):
        A(f"buffer_load_dwordx4 {v(b+16+4*nt,4)}, v221, s[8:11], {'s24' if nt < 4 else 's25'} offen offset:{(nt&3)*1024}")
    A("s_add_u32 s24, s24, 5120")
    for u in range(4):
        A(f"buffer_load_dwordx4 {v(b+4*u,4)}, v221, s[4:7], s{30+u} offen")
        A(f"s_add_u32 s{30+u}, s{30+u}, 1024")

def gen_fin(A):
    kernel_begin(A, "fin_kernel")
    A("s_cmp_ge_u32 s2, 256")
    A("s_cbranch_scc1 L_fin_end")
    stamp_begin(A)
    A("s_load_dwordx2 s[36:37], s[0:1], 0")
    A("s_load_dwordx2 s[42:43], s[0:1], 56")
    A("s_load_dwordx2 s[44:45], s[0:1], 72")
    A("v_lshrrev_b32 v1, 6, v0")
    A("v_and_b32 v223, 63, v0")
    A("v_readfirstlane_b32 s20, v1")
    A("s_and_b32 s21, s2, 3")
    A("s_lshl_b32 s21, s21, 3")
    A("s_bfe_u32 s22, s2, 0x30003")
    A("s_add_u32 s21, s21, s22")
    A("s_bfe_u32 s22, s2, 0x10002")
    A("s_lshl_b32 s22, s22, 2")
    A("s_lshr_b32 s23, s2, 6")
    A("s_add_u32 s22, s22, s23")
    A("s_mul_i32 s26, s20, 5")
    A("s_mul_i32 s24, s22, 68")
    A("s_add_u32 s24, s24, s26")
    A("s_mul_i32 s24, s24, 5120")
    for u in range(4):
        A(f"s_add_u32 s{30+u}, s20, {u}")
        A(f"s_and_b32 s{30+u}, s{30+u}, 3")
        A(f"s_lshl_b32 s35, s21, 2")
        A(f"s_add_u32 s{30+u}, s{30+u}, s35")
        A(f"s_mul_i32 s{30+u}, s{30+u}, 68")
        A(f"s_add_u32 s{30+u}, s{30+u}, s26")
        A(f"s_lshl_b32 s{30+u}, s{30+u}, 10")
    A("s_mul_i32 s34, s20, 7")
    A("s_add_u32 s34, s34, 15")
    A("s_mul_i32 s35, s34, 5120")
    A("s_lshl_b32 s34, s34, 10")
    A("v_lshlrev_b32 v221, 4, v223")
    A("s_waitcnt lgkmcnt(0)")
    srd(A, 4, 44, AH_SIZE, AH_OFF)
    srd(A, 8, 44, WF_SIZE, WF_OFF)
    for st in range(FD):
        fin_issue(A, st)
    srd(A, 16, 42, 2621440)
    srd(A, 48, 36, 2621440)
    A("v_and_b32 v222, 15, v223")
    A("v_mul_u32_u24 v224, 1280, v222")
    A("v_lshrrev_b32 v225, 4, v223")
    A("v_lshl_add_u32 v224, v225, 3, v224")
    A("s_mul_i32 s23, s22, 160")
    A("s_lshl_b32 s46, s21, 2")
    A("s_add_u32 s46, s46, s20")
    A("s_mul_i32 s46, s46, 20480")
    A("s_add_u32 s46, s46, s23")
    NS = 17
    stamp(A)
    for st in range(NS):
        issued = min(NS, st + FD)
        extra = 5 if st >= NS - FD else 0
        A(f"s_waitcnt vmcnt({9*(issued - (st+1)) + extra})")
        if st in (0, 4, 10): stamp(A)
        b = 36 * (st % FD)
        for nt in range(5):
            for u in range(4):
                acc = f"a[{4*(nt*4+u)}:{4*(nt*4+u)+3}]"
                A(f"v_mfma_f32_16x16x32_bf16 {acc}, {v(b+16+4*nt,4)}, {v(b+4*u,4)}, {'0' if st == 0 else acc}")
        if st + FD < NS:
            fin_issue(A, st + FD)
        if st + FD == NS - 1:
            for nt in range(5):
                A(f"buffer_load_dwordx2 {v(226+2*nt,2)}, v224, s[48:51], s46 offen offset:{nt*32}")
    stamp(A)
    for u in range(1, 4):
        A(f"s_add_u32 s30, s20, {u}")
        A("s_and_b32 s30, s30, 3")
        A("s_mul_i32 s30, s30, 15360")
        A(f"v_add_u32 v{80+u}, s30, v221")
    A("s_mul_i32 s30, s20, 15360")
    A("v_add_u32 v80, s30, v221")
    for u in range(1, 4):
        for nt in range(5):
            r = 4 * (nt * 4 + u)
            A(f"ds_write_b128 v{80+u}, a[{r}:{r+3}] offset:{(u-1)*5120 + nt*1024}")
    for nt in range(5):
        for i in range(4):
            A(f"v_accvgpr_read_b32 v{4*nt+i}, a{16*nt+i}")
    A("s_waitcnt vmcnt(0) lgkmcnt(0)")
    A("s_barrier")
    for u in range(3):
        for nt in range(5):
            A(f"ds_read_b128 {v(84+20*u+4*nt,4)}, v80 offset:{u*5120 + nt*1024}")
    for nt in range(5):
        a = 4 * nt
        A(f"v_lshlrev_b32 v150, 16, v{226+2*nt}")
        A(f"v_and_b32 v151, 0xffff0000, v{226+2*nt}")
        A(f"v_lshlrev_b32 v152, 16, v{227+2*nt}")
        A(f"v_and_b32 v153, 0xffff0000, v{227+2*nt}")
        for i in range(4):
            A(f"v_add_f32 v{a+i}, v{a+i}, v{150+i}")
    A("s_waitcnt lgkmcnt(0)")
    for nt in range(5):
        a = 4 * nt
        for u in range(3):
            for i in range(4):
                A(f"v_add_f32 v{a+i}, v{a+i}, v{84+20*u+4*nt+i}")
        A(f"v_cvt_pk_bf16_f32 v{154+2*nt}, v{a}, v{a+1}")
        A(f"v_cvt_pk_bf16_f32 v{155+2*nt}, v{a+2}, v{a+3}")
        A(f"buffer_store_dwordx2 {v(154+2*nt,2)}, v224, s[16:19], s46 offen offset:{nt*32}")
    endpgm(A)
    A.label("L_fin_end")
    A("s_endpgm")
```

```python
import math
from asmlib import *
from gen1 import fbits, stamp, stamp_begin, endpgm, KV_OFF, Q_OFF, XN_OFF, QSCALE, _st, DIAG
MU_OFF = 0x1300000
RS_OFF = MU_OFF + 8192
CS_OFF = MU_OFF + 16384
NSL = 5

def dma_stage(A, slot):
    for jj in range(4):
        A(f"s_add_u32 m0, s29, {slot*32768 + jj*4096}")
        A(f"s_add_u32 s30, s24, {jj*40960}")
        A("buffer_load_dwordx4 v101, s[4:7], s30 offen lds")
    for st in range(2):
        for jj in range(2):
            A(f"s_add_u32 m0, s29, {slot*32768 + 16384 + st*8192 + jj*4096}")
            A(f"s_add_u32 s30, s25, {st*128 + jj*32*3840}")
            A("buffer_load_dwordx4 v102, s[8:11], s30 offen lds")
    A("s_add_u32 s24, s24, 128")
    A(f"s_add_u32 s25, s25, {64*3840}")

def frag_reads(A, slot, ks, buf):
    fb = 64 + 16 * buf
    hi = slot >= 2
    hi2 = slot >= 4
    xa = (96 if not hi else 104 if not hi2 else 112) + ks
    wa = 100 if not hi else 108 if not hi2 else 116
    so = (slot & 1) * 32768
    for tm in range(2):
        A(f"ds_read_b128 {v(fb+4*tm,4)}, v{xa} offset:{so + tm*4096}")
    for st in range(2):
        for rd in range(2):
            A(f"ds_read_b64_tr_b16 {v(fb+8+4*st+2*rd,2)}, v{wa} offset:{so + 16384 + st*8192 + (16*ks+4*rd)*128}")

ST = 128
def loop(A, transposed, tag):
    for kt in range(10):
        slot = kt % NSL
        A("s_barrier")
        if kt in (0, 5): stamp(A, {0: 3, 5: 4}[kt])
        frag_reads(A, slot, 0, 0)
        if kt == 2:
            A("s_cmp_lg_u32 s20, 0")
            A(f"s_cbranch_scc1 L_q_nopub{tag}")
            A("s_mov_b64 exec, 3")
            A("buffer_atomic_add v121, v120, s[44:47], 0 offen sc1")
            A("s_mov_b64 exec, -1")
            A.label(f"L_q_nopub{tag}")
        if kt == 8:
            if transposed:
                for tm in range(2):
                    A(f"buffer_load_dword v{ST+tm}, v122, s[48:51], s52 offen offset:{tm*128} sc1")
                    A(f"buffer_load_dword v{ST+2+tm}, v122, s[48:51], s53 offen offset:{tm*128} sc1")
                for st in range(2):
                    for q in range(4):
                        A(f"buffer_load_dwordx4 {v(ST+4+16*st+4*q,4)}, v123, s[48:51], s54 offen offset:{st*256+q*32} sc1")
            else:
                for st in range(2):
                    A(f"buffer_load_dword v{ST+st}, v122, s[48:51], s54 offen offset:{st*256} sc1")
                for tm in range(2):
                    for q in range(4):
                        A(f"buffer_load_dwordx4 {v(ST+4+16*tm+4*q,4)}, v123, s[48:51], s52 offen offset:{tm*128+q*32} sc1")
                        A(f"buffer_load_dwordx4 {v(ST+36+16*tm+4*q,4)}, v123, s[48:51], s53 offen offset:{tm*128+q*32} sc1")
        for ks in range(4):
            if ks < 3:
                frag_reads(A, slot, ks + 1, (ks + 1) & 1)
                A("s_waitcnt lgkmcnt(6)")
            else:
                A("s_waitcnt lgkmcnt(0)")
            fb = 64 + 16 * (ks & 1)
            for tm in range(2):
                for st in range(2):
                    acc = v(16 * (2 * tm + st), 16)
                    xa, wa = v(fb + 4 * tm, 4), v(fb + 8 + 4 * st, 4)
                    c = "0" if (kt == 0 and ks == 0) else acc
                    if transposed:
                        A(f"v_mfma_f32_32x32x16_bf16 {acc}, {wa}, {xa}, {c}")
                    else:
                        A(f"v_mfma_f32_32x32x16_bf16 {acc}, {xa}, {wa}, {c}")
        if kt == 1:
            A("s_waitcnt vmcnt(0)")
        if kt == 7:
            A("s_cmp_lg_u32 s20, 0")
            A(f"s_cbranch_scc1 L_q_nopoll{tag}")
            A("s_mov_b32 s55, 0x100000")
            A.label(f"L_q_poll{tag}")
            A("buffer_load_dword v124, v120, s[44:47], 0 offen sc1")
            A("s_waitcnt vmcnt(0)")
            A("v_cmp_ne_u32 vcc, 16, v124")
            A("s_and_b32 s56, vcc_lo, 3")
            A(f"s_cbranch_scc0 L_q_nopoll{tag}")
            A("s_sleep 2")
            A("s_sub_u32 s55, s55, 1")
            A(f"s_cbranch_scc0 L_q_poll{tag}")
            A.label(f"L_q_nopoll{tag}")
    stamp(A, 5)
    A("s_waitcnt vmcnt(0)")
    A("s_nop 7")
    stamp(A, 6)
    _st["n"] = 7

def row16_sum(A, regs):
    for m in ("quad_perm:[1,0,3,2]", "quad_perm:[2,3,0,1]", "row_half_mirror", "row_mirror"):
        A("s_nop 1")
        for r in regs:
            A(f"v_add_f32_dpp v{r}, v{r}, v{r} {m} row_mask:0xf bank_mask:0xf")

def gen_qkv(A):
    kernel_begin(A, "qkv_kernel")
    A("s_cmp_ge_u32 s2, 256")
    A("s_cbranch_scc1 L_q_end")
    stamp_begin(A)
    A("s_load_dwordx4 s[32:35], s[0:1], 0")
    A("s_load_dwordx4 s[36:39], s[0:1], 64")
    A("v_lshrrev_b32 v1, 6, v0")
    A("v_and_b32 v103, 63, v0")
    A("v_readfirstlane_b32 s20, v1")
    A("s_and_b32 s31, s2, 3")
    A("s_lshl_b32 s31, s31, 2")
    A("s_bfe_u32 s30, s2, 0x20003")
    A("s_add_u32 s31, s31, s30")
    A("s_bfe_u32 s28, s2, 0x10002")
    A("s_lshl_b32 s28, s28, 3")
    A("s_lshr_b32 s30, s2, 5")
    A("s_add_u32 s28, s28, s30")
    A("s_cmp_ge_u32 s20, 4")
    A("s_cbranch_scc0 L_q_cons")
    A("s_cmp_eq_u32 s28, 15")
    A("s_cbranch_scc1 L_q_end")
    A("s_and_b32 s20, s20, 3")
    A("s_lshl_b32 s29, s20, 10")
    A("v_and_b32 v1, 3, v1")
    A("v_lshrrev_b32 v2, 3, v103")
    A("v_lshl_add_u32 v2, v1, 3, v2")
    A("v_lshrrev_b32 v3, 4, v103")
    A("v_and_b32 v4, 1, v1")
    A("v_lshl_add_u32 v4, v4, 2, v3")
    A("v_and_b32 v5, 7, v103")
    A("v_xor_b32 v4, v4, v5")
    A("v_lshlrev_b32 v4, 4, v4")
    A("v_mul_u32_u24 v101, 1280, v2")
    A("v_add_u32 v101, v101, v4")
    A("v_and_b32 v3, 1, v3")
    A("v_lshlrev_b32 v3, 2, v3")
    A("v_xor_b32 v3, v3, v5")
    A("v_lshlrev_b32 v3, 4, v3")
    A("v_mul_u32_u24 v102, 3840, v2")
    A("v_add_u32 v102, v102, v3")
    A("s_add_u32 s30, s31, s28")
    A("s_and_b32 s30, s30, 1")
    A("s_mul_i32 s26, s30, 1280")
    A(f"s_mul_i32 s27, s30, {640*3840}")
    A("s_mul_i32 s24, s31, 163840")
    A("s_lshr_b32 s30, s26, 1")
    A("s_add_u32 s24, s24, s30")
    A("s_lshl_b32 s25, s28, 8")
    A("s_lshr_b32 s30, s27, 1")
    A("s_add_u32 s25, s25, s30")
    A("s_waitcnt lgkmcnt(0)")
    srd(A, 4, 32, 2621440)
    srd(A, 8, 34, 640 * 3840)
    for p in range(NSL):
        dma_stage(A, p)
    A("s_sub_u32 s24, s24, s26")
    A("s_sub_u32 s25, s25, s27")
    stamp(A, 2)
    for kt in range(10):
        issued = min(10, max(NSL, kt - 1 + NSL))
        A(f"s_waitcnt vmcnt({8*(issued - kt - 1)})")
        A("s_barrier")
        if kt in (0, 5): stamp(A, {0: 3, 5: 4}[kt])
        if kt >= 1 and kt - 1 + NSL < 10:
            dma_stage(A, (kt - 1) % NSL)
    if DIAG:
        stamp(A, 5); stamp(A, 6); _st["n"] = 7
    endpgm(A)
    A.label("L_q_cons")
    A("s_lshr_b32 s21, s20, 1")
    A("s_and_b32 s22, s20, 1")
    A("v_and_b32 v118, 15, v103")
    A("v_lshrrev_b32 v119, 4, v103")
    A("s_lshl_b32 s40, s31, 7")
    A("s_lshl_b32 s41, s28, 3")
    A("s_add_u32 s40, s40, s41")
    A("s_lshl_b32 s41, s22, 2")
    A("s_add_u32 s40, s40, s41")
    A("s_cmp_eq_u32 s21, 0")
    A("s_cbranch_scc0 L_q_colsum")
    A("v_mul_u32_u24 v2, 1280, v119")
    A("v_lshl_add_u32 v2, v118, 4, v2")
    A("s_mul_i32 s41, s40, 1280")
    A("s_waitcnt lgkmcnt(0)")
    srd(A, 4, 32, 2621440)
    for i in range(5):
        A(f"buffer_load_dwordx4 {v(4+4*i,4)}, v2, s[4:7], s41 offen offset:{i*256}")
    srd(A, 8, 38, 2621440, XN_OFF)
    srd(A, 48, 38, 16384 + 7680, MU_OFF)
    A("v_add_u32 v3, s40, v119")
    A("v_lshrrev_b32 v64, 5, v3")
    A("v_mul_u32_u24 v64, 40960, v64")
    A("v_and_b32 v65, 31, v3")
    A("v_lshl_add_u32 v64, v65, 4, v64")
    A("v_lshl_add_u32 v64, v118, 9, v64")
    A("v_lshlrev_b32 v65, 2, v3")
    A("s_waitcnt vmcnt(0)")
    for i in range(20):
        A(f"v_lshlrev_b32 v{24+2*i}, 16, v{4+i}")
        A(f"v_and_b32 v{25+2*i}, 0xffff0000, v{4+i}")
    A("v_add_f32 v66, v24, v25")
    A("v_add_f32 v67, v26, v27")
    for i in range(4, 40, 2):
        A(f"v_add_f32 v66, v66, v{24+i}")
        A(f"v_add_f32 v67, v67, v{25+i}")
    A("v_add_f32 v66, v66, v67")
    row16_sum(A, [66])
    A(f"v_mul_f32 v66, {hex(fbits(1.0/640))}, v66")
    for i in range(40):
        A(f"v_sub_f32 v{24+i}, v{24+i}, v66")
    A("v_mul_f32 v67, v24, v24")
    A("v_mul_f32 v68, v25, v25")
    for i in range(2, 40, 2):
        A(f"v_fmac_f32 v67, v{24+i}, v{24+i}")
        A(f"v_fmac_f32 v68, v{25+i}, v{25+i}")
    A("v_add_f32 v67, v67, v68")
    row16_sum(A, [67])
    A(f"v_mov_b32 v68, {hex(fbits(1e-5))}")
    A(f"v_fmac_f32 v68, {hex(fbits(1.0/640))}, v67")
    A("v_rsq_f32 v68, v68")
    A("v_cmp_eq_u32 vcc, 0, v118")
    A("s_mov_b32 s41, 8192")
    A("s_mov_b64 exec, vcc")
    A("buffer_store_dword v66, v65, s[48:51], 0 offen sc1")
    A("buffer_store_dword v68, v65, s[48:51], s41 offen sc1")
    A("s_mov_b64 exec, -1")
    for i in range(40):
        A(f"v_mul_f32 v{24+i}, v{24+i}, v68")
    for i in range(5):
        for j in range(4):
            A(f"v_cvt_pk_bf16_f32 v{4+4*i+j}, v{24+8*i+2*j}, v{25+8*i+2*j}")
        A(f"s_mov_b32 s41, {i*8192}")
        A(f"buffer_store_dwordx4 {v(4+4*i,4)}, v64, s[8:11], s41 offen")
    A("s_branch L_q_statdone")
    A.label("L_q_colsum")
    A("s_waitcnt lgkmcnt(0)")
    srd(A, 48, 38, 16384 + 7680, MU_OFF)
    A("s_cmp_eq_u32 s28, 15")
    A("s_cbranch_scc1 L_q_statdone")
    srd(A, 8, 34, 640 * 3840)
    A("s_lshl_b32 s41, s28, 7")
    A("s_lshl_b32 s42, s31, 3")
    A("s_add_u32 s41, s41, s42")
    A("s_lshl_b32 s42, s22, 2")
    A("s_add_u32 s41, s41, s42")
    A("s_lshl_b32 s42, s41, 1")
    A("v_mul_u32_u24 v2, 3840, v103")
    for i in range(10):
        A(f"buffer_load_dwordx2 {v(4+2*i,2)}, v2, s[8:11], s42 offen")
        A(f"s_add_u32 s42, s42, {64*3840}")
    A("s_lshl_b32 s41, s41, 2")
    A("s_add_u32 s41, s41, 16384")
    A("s_waitcnt vmcnt(0)")
    for i in range(20):
        A(f"v_lshlrev_b32 v{24+2*i}, 16, v{4+i}")
        A(f"v_and_b32 v{25+2*i}, 0xffff0000, v{4+i}")
    for i in range(1, 10):
        for j in range(4):
            A(f"v_add_f32 v{24+j}, v{24+j}, v{24+4*i+j}")
    row16_sum(A, [24, 25, 26, 27])
    for p in ("v_permlane16_swap_b32", "v_permlane32_swap_b32"):
        for j in range(4):
            A(f"v_mov_b32 v{28+j}, v{24+j}")
        A("s_nop 0")
        for j in range(4):
            A(f"{p} v{24+j}, v{28+j}")
        A("s_nop 0")
        for j in range(4):
            A(f"v_add_f32 v{24+j}, v{24+j}, v{28+j}")
    A("v_mov_b32 v2, 0")
    A("s_mov_b64 exec, 1")
    A("buffer_store_dwordx4 v[24:27], v2, s[48:51], s41 offen sc1")
    A("s_mov_b64 exec, -1")
    A.label("L_q_statdone")
    srd(A, 44, 36, 256)
    A("s_lshl_b32 s41, s31, 2")
    A("s_lshl_b32 s42, s28, 2")
    A("s_add_u32 s42, s42, 64")
    A("v_mov_b32 v120, s41")
    A("v_writelane_b32 v120, s42, 1")
    A("v_mov_b32 v121, 1")
    A("s_cmp_eq_u32 s28, 15")
    A("s_cbranch_scc0 L_q_gemm")
    A("s_waitcnt vmcnt(0)")
    A("s_barrier")
    A("s_cmp_lg_u32 s20, 0")
    A("s_cbranch_scc1 L_q_end")
    A("s_mov_b64 exec, 1")
    A("buffer_atomic_add v121, v120, s[44:47], 0 offen sc1")
    A("s_endpgm")
    A.label("L_q_gemm")
    A("v_and_b32 v125, 31, v103")
    A("v_lshrrev_b32 v126, 5, v103")
    A("s_lshl_b32 s30, s21, 13")
    A("v_lshl_add_u32 v2, v125, 7, s30")
    A("v_bfe_u32 v3, v103, 1, 3")
    A("v_xor_b32 v3, v3, v126")
    for ks in range(4):
        A(f"v_xor_b32 v1, {2*ks}, v3")
        A(f"v_lshl_add_u32 v{96+ks}, v1, 4, v2")
        A(f"v_add_u32 v{104+ks}, 0x10000, v{96+ks}")
        A(f"v_add_u32 v{112+ks}, 0x20000, v{96+ks}")
    A("v_bfe_u32 v2, v103, 2, 2")
    A("v_lshl_add_u32 v2, v126, 3, v2")
    A("v_lshlrev_b32 v2, 7, v2")
    A("v_bfe_u32 v3, v103, 4, 1")
    A("v_lshlrev_b32 v3, 5, v3")
    A("v_and_b32 v1, 3, v103")
    A("v_lshl_add_u32 v3, v1, 3, v3")
    A("v_bfe_u32 v1, v103, 3, 1")
    A("v_xor_b32 v1, s22, v1")
    A("v_lshl_add_u32 v3, v1, 6, v3")
    A("v_add_u32 v100, v2, v3")
    A("v_add_u32 v108, 0x10000, v100")
    A("v_add_u32 v116, 0x20000, v100")
    A("v_lshlrev_b32 v122, 2, v125")
    A("v_lshlrev_b32 v123, 4, v126")
    A("s_lshl_b32 s42, s31, 2")
    A("s_lshl_b32 s43, s21, 1")
    A("s_add_u32 s42, s42, s43")
    A("s_lshl_b32 s52, s42, 7")
    A("s_add_u32 s53, s52, 8192")
    A("s_lshl_b32 s54, s28, 9")
    A("s_lshl_b32 s43, s22, 7")
    A("s_add_u32 s54, s54, s43")
    A("s_add_u32 s54, s54, 16384")
    stamp(A, 2)
    A("s_cmp_ge_u32 s28, 10")
    A("s_cbranch_scc1 L_q_V")
    loop(A, True, "T")
    A("s_cmp_ge_u32 s28, 5")
    A(f"s_mov_b32 s44, {Q_OFF}")
    A(f"s_cmov_b32 s44, {KV_OFF}")
    A("s_mov_b32 s45, 81920")
    A("s_cmov_b32 s45, 163840")
    A("s_mov_b32 s46, 1280")
    A("s_cmov_b32 s46, 2560")
    A(f"s_cselect_b32 s47, 1.0, {hex(fbits(QSCALE))}")
    A("s_cselect_b32 s48, 160, 0")
    A("s_mov_b32 s18, 2621440")
    A("s_cmov_b32 s18, 5242880")
    A("s_add_u32 s16, s38, s44")
    A("s_addc_u32 s17, s39, 0")
    A("s_mov_b32 s19, 0x00020000")
    A("s_lshl_b32 s49, s28, 5")
    A("s_sub_u32 s49, s49, s48")
    A("s_lshl_b32 s50, s22, 3")
    A("s_add_u32 s49, s49, s50")
    A("s_mul_i32 s50, s42, s46")
    A("s_add_u32 s51, s50, s46")
    A("v_add_u32 v64, s49, v126")
    A("v_lshlrev_b32 v65, 4, v125")
    for tm in range(2):
        A(f"v_mul_f32 v{ST+2+tm}, s47, v{ST+2+tm}")
    for st in range(2):
        for q in range(4):
            A(f"v_add_u32 v66, {st*16+2*q}, v64")
            A("v_mul_u32_u24 v67, 205, v66")
            A("v_lshrrev_b32 v67, 10, v67")
            A("v_mul_u32_u24 v68, 5, v67")
            A("v_sub_u32 v66, v66, v68")
            A("v_lshrrev_b32 v68, 2, v66")
            A("v_lshrrev_b32 v68, v68, v65")
            A("v_mad_u32_u24 v68, v67, s45, v68")
            A("v_lshrrev_b32 v67, 1, v66")
            A("v_lshl_add_u32 v68, v67, 9, v68")
            A("v_and_b32 v67, 1, v66")
            A("v_lshl_add_u32 v68, v67, 3, v68")
            for tm in range(2):
                a = 16 * (2 * tm + st) + 4 * q
                d = 70 + 2 * tm
                for i in range(4):
                    A(f"v_fma_f32 v{a+i}, -v{ST+tm}, v{ST+4+16*st+4*q+i}, v{a+i}")
                for i in range(4):
                    A(f"v_mul_f32 v{a+i}, v{ST+2+tm}, v{a+i}")
                A(f"v_cvt_pk_bf16_f32 v{d}, v{a}, v{a+1}")
                A(f"v_cvt_pk_bf16_f32 v{d+1}, v{a+2}, v{a+3}")
                A(f"buffer_store_dwordx2 {v(d,2)}, v68, s[16:19], s{50+tm} offen")
    endpgm(A)
    A.label("L_q_V")
    loop(A, False, "V")
    srd(A, 16, 38, 5242880, KV_OFF)
    A("s_lshl_b32 s49, s28, 7")
    A("s_sub_u32 s49, s49, 1280")
    A("s_lshl_b32 s50, s22, 5")
    A("s_add_u32 s49, s49, s50")
    A("s_mul_i32 s50, s42, 2560")
    A("s_add_u32 s51, s50, 2560")
    A("s_mov_b32 s45, 163840")
    A("v_mul_u32_u24 v65, 320, v126")
    for st in range(2):
        A(f"v_add_u32 v66, s49, v125")
        if st:
            A("v_add_u32 v66, 64, v66")
        A("v_mul_u32_u24 v67, 3277, v66")
        A("v_lshrrev_b32 v67, 16, v67")
        A("v_mul_u32_u24 v68, 20, v67")
        A("v_sub_u32 v66, v66, v68")
        A("v_lshl_add_u32 v68, v66, 4, v65")
        va = 64 if st else 69
        A(f"v_mad_u32_u24 v{va}, v67, s45, v68")
        for tm in range(2):
            for mf in range(2):
                a = 16 * (2 * tm + st) + 8 * mf
                d = 72 + 4 * (mf + 2 * tm)
                for i in range(8):
                    A(f"v_fma_f32 v{a+i}, -v{ST+4+16*tm+8*mf+i}, v{ST+st}, v{a+i}")
                for i in range(8):
                    A(f"v_mul_f32 v{a+i}, v{ST+36+16*tm+8*mf+i}, v{a+i}")
                for i in range(4):
                    A(f"v_cvt_pk_bf16_f32 v{d+i}, v{a+2*i}, v{a+2*i+1}")
                A(f"buffer_store_dwordx4 {v(d,4)}, v{va}, s[16:19], s{50+tm} offen offset:{1280+mf*640}")
    endpgm(A)
    A.label("L_q_end")
    A("s_endpgm")
```

```python
import sys
from asmlib import *
import qkv2, k2
def desc_acc(name, arch, acc, sgpr=96):
    d = kernel_desc(name, arch, sgpr)
    return d.replace(f".amdhsa_next_free_vgpr {arch}", f".amdhsa_next_free_vgpr {arch+acc}")
def main(path):
    A = Asm()
    hdr = f"""; [LN-folded QKV GEMM] -> [attention || gate/up GEMM || weight re-layout] -> [output GEMM]  (hand-designed, emitted by gen/gen3.py)
; @launch kernel=qkv_kernel grid=(256,1,1) block=(512,1,1) lds=163840
; @launch kernel=mid_kernel grid=(512,1,1) block=(512,1,1) lds=81920
; @launch kernel=fin_kernel grid=(256,1,1) block=(256,1,1) lds=61440
.amdgcn_target "amdgcn-amd-amdhsa--gfx950"
.text
"""
    qkv2.gen_qkv(A); k2.gen_k2(A); k2.gen_fin(A)
    out = hdr + A.text() + '.section .rodata,"a"\n'
    out += kernel_desc("qkv_kernel", 196) + kernel_desc("mid_kernel", 128) + desc_acc("fin_kernel", 236, 80)
    open(path, "w").write(out)
main(sys.argv[1])
```
